```python
import torch

def _softmax(x, axis=-1):
    return torch.softmax(x, dim=axis)
def _gelu(x):
    return torch.nn.functional.gelu(x, approximate="tanh")
def _silu(x):
    return torch.nn.functional.silu(x)
def _sigmoid(x):
    return torch.sigmoid(x)
def _layernorm(x, axis=-1, eps=1e-5):
    m = x.mean(dim=axis, keepdim=True)
    v = x.var(dim=axis, keepdim=True, unbiased=False)
    return (x - m) / torch.sqrt(v + eps)
def _scatter_add(tgt, idx, src, axis=0):
    return tgt.clone().index_add_(axis, idx, src)
def _segment_sum(src, seg, n):
    out = torch.zeros((n,) + src.shape[1:], dtype=src.dtype)
    return out.index_add_(0, seg, src)
def _pad(x, pw):
    flat = tuple(v for pair in reversed(pw) for v in pair)
    return torch.nn.functional.pad(x, flat)

kernel_name = 'parallel_sum__mha_block__glu_gated_bilinear__prompt'

def setup_inputs():

    _w = (lambda a: (lambda t: t.to(torch.bfloat16) if t.is_floating_point() else t)(torch.as_tensor(a)))
    def _A_setup():
        B, S, D, H = 1, 2048, 640, 32
        return {
            "x": _w((lambda *s: torch.randn(*s, dtype=torch.bfloat16) * 0.05)(B, S, D)),
            "wqkv": _w((lambda *s: torch.randn(*s, dtype=torch.bfloat16) * 0.05)(D, 3 * D)),
            "wo": _w((lambda *s: torch.randn(*s, dtype=torch.bfloat16) * 0.05)(D, D)),
        }
    _A_in = _A_setup()

    def _B_setup():
        B, S, D, F = 1, 2048, 640, 1728
        return {
            "x": _w((lambda *s: torch.randn(*s, dtype=torch.bfloat16) * 0.05)(B, S, D)),
            "w_gate": _w((lambda *s: torch.randn(*s, dtype=torch.bfloat16) * 0.8)(D, F) * (D ** -0.5)),
            "w_up": _w((lambda *s: torch.randn(*s, dtype=torch.bfloat16) * 0.8)(D, F) * (D ** -0.5)),
            "w_down": _w((lambda *s: torch.randn(*s, dtype=torch.bfloat16) * 0.8)(F, D) * (F ** -0.5)),
        }
    _B_in = _B_setup()

    return {
        "A_x": _A_in["x"],
        "A_wqkv": _A_in["wqkv"],
        "A_wo": _A_in["wo"],
        "B_x": _B_in["x"],
        "B_w_gate": _B_in["w_gate"],
        "B_w_up": _B_in["w_up"],
        "B_w_down": _B_in["w_down"],
    }

def reference(A_x, A_wqkv, A_wo, B_x, B_w_gate, B_w_up, B_w_down):
    def _A_ref(x, wqkv, wo):
        B, S, D = x.shape
        H = 32
        Dh = D // H
        qkv = (lambda x, *d: x.permute(*d))((x @ wqkv).reshape(B, S, 3, H, Dh), 2, 0, 3, 1, 4)
        q, k, v = qkv[0], qkv[1], qkv[2]
        scores = torch.einsum("bhqd,bhkd->bhqk", q, k) * (Dh ** -0.5)
        p = _softmax(scores, axis=-1)
        o = torch.einsum("bhqk,bhkd->bhqd", p, v)
        return (lambda x, *d: x.permute(*d))(o, 0, 2, 1, 3).reshape(B, S, D) @ wo

    def _B_ref(x, w_gate, w_up, w_down):
        g = torch.einsum("bsd,df->bsf", x, w_gate)
        u = torch.einsum("bsd,df->bsf", x, w_up)
        h = g * u
        return torch.einsum("bsf,fd->bsd", h, w_down)

    x = A_x
    xn = _layernorm(x, axis=-1)
    return x + _A_ref(xn, A_wqkv, A_wo) + _B_ref(xn, B_w_gate, B_w_up, B_w_down)
```

```python
class Asm:
    def __init__(self):
        self.lines = []
        self.lab = 0
    def __call__(self, s):
        for l in s.strip("\n").split("\n"):
            self.lines.append("    " + l.strip())
    def label(self, name):
        self.lines.append(name + ":")
    def newlabel(self, p="L"):
        self.lab += 1
        return "%s_%d" % (p, self.lab)
    def text(self):
        return "\n".join(self.lines) + "\n"

def vr(b, n=1):
    return "v%d" % b if n == 1 else "v[%d:%d]" % (b, b + n - 1)
def sr(b, n=1):
    return "s%d" % b if n == 1 else "s[%d:%d]" % (b, b + n - 1)

def srd(a, d, base, nbytes):
    a("s_mov_b32 s%d, s%d" % (d, base))
    a("s_mov_b32 s%d, s%d" % (d + 1, base + 1))
    a("s_mov_b32 s%d, 0x%x" % (d + 2, nbytes))
    a("s_mov_b32 s%d, 0x00020000" % (d + 3))

def srd_off(a, d, base, off, nbytes):
    a("s_add_u32 s%d, s%d, 0x%x" % (d, base, off))
    a("s_addc_u32 s%d, s%d, 0" % (d + 1, base + 1))
    a("s_mov_b32 s%d, 0x%x" % (d + 2, nbytes))
    a("s_mov_b32 s%d, 0x00020000" % (d + 3))

def interleave(main, fill):
    out = []
    n = len(main)
    k = 0
    for i, m in enumerate(main):
        out.append(m)
        tgt = (len(fill) * (i + 1) + n - 1) // n
        while k < tgt and k < len(fill):
            out.append(fill[k]); k += 1
    out += fill[k:]
    return out
```

```python
from dsl import *
import os
FL = os.environ.get('FL', '').split(',')

QF_OFF  = 0x000000; QF_SZ  = 32*64*1536
KV_OFF  = 0x300000; KV_SZ  = 32*64*2560
KNT_OFF = 0x800000; KNT_SZ = 32*64*4
HF_OFF  = 0x900000; HF_SZ  = 64*108*1024
WDF_OFF = 0x1000000; WDF_SZ = 20*108*1024
WOF_OFF = 0x1300000; WOF_SZ = 20*40*1024
OF_OFF  = 0x1400000; OF_SZ  = 64*40*1024
BP_OFF  = 0x1800000; BP_SZ  = 2048*640*2

WST = 24576
XB  = 98304
K1_LDS = XB + 3*16384


import struct
def f2u(x): return struct.unpack("<I", struct.pack("<f", x))[0]
QSCALE = (20 ** -0.5) * 1.4426950408889634

S_X, S_WQKV, S_WO, S_WG, S_WU, S_WD, S_WS = 4, 6, 8, 10, 12, 14, 16
SRD_A, SRD_B, SRD_X, SRD_O = 20, 24, 28, 32
S_M, S_N, S_W, S_WM, S_WN = 36, 37, 38, 39, 40
S_SOA, S_SOB, S_SOX = 41, 42, 43
S_STRIDE32 = 44
S_WT = 45
S_XT = 46
S_WN8 = 45
S_LW = 47
S_LX = 48
S_IT = 49
S_XD = 50
S_XS = 51
S_MASK = 52
S_LAST = 53
S_T0, S_T1, S_T2, S_T3 = 54, 55, 56, 57
S_COL = 58
S_LWB = 59
S_XROW = 60
S_XSLOT = 61
S_TILE = 62
S_LXB = 63
SRD_O2 = 64

V_DW = 1
V_DX = 4
V_T0, V_T1 = 6, 7
V_WF = 8
V_XF = 32
V_U = 40
V_CS = 48
V_SX = 60
V_SXX = 62
V_WA = 64
V_XA = 68
V_T2 = 72
V_PF = 73
V_XS = 74
V_ACC = 80
K1_NV = 176

TS = os.environ.get("TS", "1") == "1"
def tstamp(a, i):
    if TS:
        a("s_memtime s[%d:%d]" % (70 + 2 * i, 71 + 2 * i))

def tsdump(a, n, ids, wreg):
    if not TS: return
    l = a.newlabel("TSD")
    a("s_waitcnt vmcnt(0) lgkmcnt(0)")
    tstamp(a, n)
    a("s_load_dwordx2 s[90:91], s[0:1], 64")
    a("s_waitcnt lgkmcnt(0)")
    a("s_mov_b32 s92, -1")
    for r, i in enumerate(ids):
        a("s_cmp_eq_u32 s2, %d" % i); a("s_cselect_b32 s92, %d, s92" % (32 * r))
    a("s_cmp_lg_u32 s%d, 0" % wreg); a("s_cselect_b32 s92, -1, s92")
    a("s_cmp_lt_i32 s92, 0")
    a("s_cbranch_scc1 %s" % l)
    a("s_mov_b32 s96, s90"); a("s_mov_b32 s97, s91"); a("s_mov_b32 s98, 256"); a("s_mov_b32 s99, 0x00020000")
    for i in range(1, n + 1):
        a("s_sub_u32 s93, s%d, s70" % (70 + 2 * i))
        a("v_mov_b32 v1, s93")
        a("v_mov_b32 v2, s92")
        a("buffer_store_dword v1, v2, s[96:99], 0 offen offset:%d" % (4 * (i - 1)))
    a("s_waitcnt vmcnt(0)")
    a.label(l)

def dma_w():
    return [["s_add_u32 m0, s%d, %d" % (S_LW, p * 1024),
             "buffer_load_dwordx4 v%d, s[%d:%d], s%d offen lds" % (V_DW + p, SRD_A, SRD_A + 3, S_SOA)] for p in range(3)]

def dma_w_adv():
    return ["s_add_u32 s%d, s%d, %d" % (S_LW, S_LW, WST),
            "s_cmp_ge_u32 s%d, s%d" % (S_LW, 66),
            "s_cselect_b32 s%d, s%d, s%d" % (S_LW, S_LWB, S_LW),
            "s_add_u32 s%d, s%d, s%d" % (S_SOA, S_SOA, S_STRIDE32),
            "s_min_u32 s%d, s%d, s%d" % (S_SOA, S_SOA, S_LAST)]

def dma_x():
    return [["s_add_u32 m0, s%d, %d" % (S_LX, ip * 1024),
             "buffer_load_dwordx4 v%d, s[%d:%d], s%d offen lds" % (V_DX + ip, SRD_X, SRD_X + 3, S_SOX)] for ip in range(2)]

def dma_x_adv():
    return ["s_add_u32 s%d, s%d, 16384" % (S_LX, S_LX),
            "s_cmp_ge_u32 s%d, s67" % S_LX,
            "s_cselect_b32 s%d, s%d, s%d" % (S_LX, S_LXB, S_LX),
            "s_add_u32 s%d, s%d, 128" % (S_SOX, S_SOX),
            "s_min_u32 s%d, s%d, s68" % (S_SOX, S_SOX)]

def wread(role, f, sp, stage_odd, nxt):
    res = []
    for u in range(2):
        imm = sp * 6144 + u * 1536 + (WST if stage_odd else 0)
        if role == "gu":
            areg = V_WA + (1 if nxt else 0)
            imm += (f % 3) * 256 + (12288 if f >= 3 else 0)
        elif role == "v":
            areg = V_WA + (1 if nxt else 0)
            imm += f * 256
        else:
            areg = V_WA + (0 if f % 2 == 0 else 2) + (1 if nxt else 0)
            imm += (f // 2) * 256
        d = V_WF + f * 4 + u * 2
        res.append("ds_read_b64_tr_b16 v[%d:%d], v%d offset:%d" % (d, d + 1, areg, imm))
    return res

def accreg(f):
    return V_ACC + f * 16

def mfma(role, f, xf):
    acc = accreg(f); wf = V_WF + f * 4
    if role == "v":
        return "v_mfma_f32_32x32x16_bf16 v[%d:%d], v[%d:%d], v[%d:%d], v[%d:%d]" % (acc, acc + 15, xf, xf + 3, wf, wf + 3, acc, acc + 15)
    return "v_mfma_f32_32x32x16_bf16 v[%d:%d], v[%d:%d], v[%d:%d], v[%d:%d]" % (acc, acc + 15, wf, wf + 3, xf, xf + 3, acc, acc + 15)

def unpack(src, t):
    return ["v_lshlrev_b32 v%d, 16, v%d" % (t, src), "v_and_b32 v%d, s%d, v%d" % (t + 1, S_MASK, src)]

def kstep(role, s, extra, wm):
    NT = 6 if role == "gu" else 5
    xb = V_XF + (s & 1) * 4
    xn = V_XF + ((s + 1) & 1) * 4
    sb = V_XS + (s & 1) * 2
    sn_ = V_XS + ((s + 1) & 1) * 2
    out = []
    sn = (s + 1) & 3
    loc = {0: (1, False, False), 1: (0, True, False), 2: (1, True, False), 3: (0, False, True)}[s]
    stat = []
    if 'nodot' not in FL:
        for r in range(2):
            t = V_U + r * 2
            g = unpack(sb + r, t)
            stat.append(g)
            stat.append(["v_add_f32 v%d, v%d, v%d" % (V_SX, V_SX, t),
                 "v_add_f32 v%d, v%d, v%d" % (V_SX + 1, V_SX + 1, t + 1)])
            stat.append(["v_fmac_f32 v%d, v%d, v%d" % (V_SXX, t, t),
                 "v_fmac_f32 v%d, v%d, v%d" % (V_SXX + 1, t + 1, t + 1)])
    if 'nodma' in FL: extra = []
    q = stat + list(extra)
    per = (len(q) + NT - 1) // NT
    def fl(l):
        o = []
        for x in l:
            if isinstance(x, list): o += x
            else: o.append(x)
        return o
    for f in range(NT):
        n = 2 * (NT - 1) if f == 0 else 2 * (NT - 1) + 2
        out.append("s_waitcnt lgkmcnt(%d)" % n)
        wf = V_WF + f * 4
        out.append(mfma(role, f, xb))
        if f == 0:
            out.append("ds_read_b128 v[%d:%d], v%d" % (xn, xn + 3, V_XA + sn))
            out.append("v_add_u32 v%d, s%d, v%d" % (V_U + 6, S_WN8, V_XA + sn))
            out.append("v_add_u32 v%d, s%d, v%d" % (V_XA + sn, S_XD, V_XA + sn))
            out.append("ds_read_b64 v[%d:%d], v%d" % (sn_, sn_ + 1, V_U + 6))
        if 'nodot' not in FL:
            t = V_U + 4
            out += unpack(wf + wm, t)
            c = V_CS + 2 * f
            out.append("v_add_f32 v%d, v%d, v%d" % (c, c, t))
            out.append("v_add_f32 v%d, v%d, v%d" % (c + 1, c + 1, t + 1))
        out += wread(role, f, *loc) + fl(q[f * per:(f + 1) * per])
    if s == 3:
        for r in range(4 if role == "qk" else 2):
            out.append("v_xor_b32 v%d, 0xc000, v%d" % (V_WA + r, V_WA + r))
    return out

def dgroups(gs):
    return [g[:-1] + ["s_nop 0", g[-1]] for g in gs]

def k1_main_loop(a, role, wm):
    L = a.newlabel("K1LOOP")
    a.label(L)
    for x in kstep(role, 0, [], wm): a(x)
    a("s_waitcnt vmcnt(3)")
    if 'nobar' not in FL: a("s_barrier")
    ex = [dma_w_adv()] + dgroups(dma_w()) + [dma_x_adv()] + dgroups(dma_x())
    for x in kstep(role, 1, ex, wm): a(x)
    for x in kstep(role, 2, [], wm): a(x)
    a("s_waitcnt vmcnt(5)")
    if 'nobar' not in FL: a("s_barrier")
    upd = ["s_add_u32 s%d, s%d, 1" % (S_XS, S_XS),
           "s_cmp_eq_u32 s%d, 3" % S_XS,
           "s_cselect_b32 s%d, 0, s%d" % (S_XS, S_XS),
           "s_cmp_eq_u32 s%d, 2" % S_XS,
           "s_cselect_b32 s%d, 0xffff8000, s%d" % (S_XD, S_T3)]
    ex = [upd_ for upd_ in []] + [dma_w_adv()] + dgroups(dma_w())
    for x in upd: a(x)
    for x in kstep(role, 3, ex, wm): a(x)
    a("s_add_u32 s%d, s%d, 1" % (S_IT, S_IT))
    a("s_cmp_lt_u32 s%d, 10" % S_IT)
    a("s_cbranch_scc1 %s" % L)

def rne_bf16_hi(a, dst, src):
    a("v_cvt_pk_bf16_f32 v%d, v%d, v%d" % (dst, src, src))
    a("v_and_b32 v%d, 0xffff0000, v%d" % (dst, dst))

def halves_sum(a, r, t):
    a("v_mov_b32 v%d, v%d" % (t, r))
    a("s_nop 1")
    a("v_permlane32_swap_b32 v%d, v%d" % (t, r))
    a("s_nop 1")
    a("v_add_f32 v%d, v%d, v%d" % (r, r, t))

def k1(a):
    a("s_cmp_ge_u32 s2, 256")
    a("s_cbranch_scc1 K1_END")
    tstamp(a, 0)
    a("s_load_dwordx4 s[4:7], s[0:1], 0")
    a("s_load_dwordx2 s[8:9], s[0:1], 16")
    a("s_load_dwordx4 s[12:15], s[0:1], 40")
    a("s_load_dwordx2 s[10:11], s[0:1], 32")
    a("s_load_dwordx2 s[16:17], s[0:1], 72")
    a("v_lshrrev_b32 v1, 6, v0")
    a("s_and_b32 s%d, s2, 7" % S_T0)
    a("s_lshr_b32 s%d, s2, 3" % S_T1)
    a("v_readfirstlane_b32 s%d, v1" % S_W)
    a("s_and_b32 s%d, s%d, 1" % (S_M, S_T0))
    a("s_lshl_b32 s%d, s%d, 3" % (S_M, S_M))
    a("s_and_b32 s69, s%d, 7" % S_T1)
    a("s_add_u32 s%d, s%d, s69" % (S_M, S_M))
    a("s_lshr_b32 s%d, s%d, 1" % (S_N, S_T0))
    a("s_lshl_b32 s%d, s%d, 2" % (S_N, S_N))
    a("s_lshr_b32 s65, s%d, 3" % S_T1)
    a("s_add_u32 s%d, s%d, s65" % (S_N, S_N))
    a("s_lshr_b32 s%d, s%d, 2" % (S_WN, S_W))
    a("s_and_b32 s%d, s%d, 3" % (S_WM, S_W))
    a("s_lshl_b32 s%d, s%d, 3" % (S_WN8, S_WN))
    a("v_mov_b32 v%d, v0" % V_T2)
    a("v_and_b32 v0, 63, v0")
    a("s_mov_b32 s%d, 0xffff0000" % S_MASK)
    a("v_lshrrev_b32 v6, 4, v0")
    a("v_bfe_u32 v7, v0, 2, 2")
    a("v_and_b32 v9, 3, v0")
    a("v_lshlrev_b32 v9, 4, v9")
    a("s_and_b32 s%d, s%d, 1" % (S_T2, S_W))
    a("s_lshr_b32 s%d, s%d, 1" % (S_T3, S_W))
    a("s_mul_i32 s%d, s%d, 12288" % (S_LWB, S_T2))
    a("s_mul_i32 s%d, s%d, 3072" % (S_T1, S_T3))
    a("s_add_u32 s%d, s%d, s%d" % (S_LWB, S_LWB, S_T1))
    a("s_add_u32 s66, s%d, %d" % (S_LWB, 4 * WST))
    a("s_lshl_b32 s%d, s%d, 11" % (S_LXB, S_W))
    a("s_add_u32 s%d, s%d, %d" % (S_LXB, S_LXB, XB))
    a("s_add_u32 s67, s%d, %d" % (S_LXB, 3 * 16384))
    a("s_lshl_b32 s%d, s%d, 3" % (S_T1, S_T3))
    a("v_add_u32 v7, s%d, v7" % S_T1)
    a("v_lshrrev_b32 v8, 3, v0")
    a("s_lshl_b32 s%d, s%d, 4" % (S_T1, S_W))
    a("v_add_u32 v8, s%d, v8" % S_T1)
    a("v_mul_u32_u24 v8, 1280, v8")
    a("v_and_b32 v10, 7, v0")
    a("v_xor_b32 v11, v6, v10")
    a("v_lshl_add_u32 v%d, v11, 4, v8" % V_DX)
    a("v_xor_b32 v11, 4, v11")
    a("v_lshl_add_u32 v%d, v11, 4, v8" % (V_DX + 1))
    a("v_add_u32 v%d, %d, v%d" % (V_DX + 1, 8 * 1280, V_DX + 1))
    a("s_mul_i32 s%d, s%d, %d" % (S_XROW, S_M, 128 * 1280))
    a("s_add_u32 s68, s%d, %d" % (S_XROW, 9 * 128))
    a("s_mov_b32 s%d, s%d" % (S_SOX, S_XROW))
    a("s_mov_b32 s%d, s%d" % (S_LX, S_LXB))
    a("s_mov_b32 s%d, s%d" % (S_LW, S_LWB))
    a("s_waitcnt lgkmcnt(0)")
    a("s_cmp_eq_u32 s%d, 15" % S_N)
    a("s_cbranch_scc1 K1_AUX")
    srd(a, SRD_X, S_X, 2048 * 1280)
    def issue(gs):
        for g in dgroups(gs):
            for x in g: a(x)
    issue(dma_x())
    a("s_cmp_lt_u32 s%d, 6" % S_N)
    a("s_cbranch_scc0 K1_SETGU")
    srd(a, SRD_A, S_WQKV, 640 * 3840)
    a("s_movk_i32 s%d, 3840" % S_T0)
    a("s_mul_i32 s%d, s%d, 640" % (S_COL, S_N))
    a("s_mul_i32 s%d, s%d, 320" % (S_T1, S_T2))
    a("s_add_u32 s%d, s%d, s%d" % (S_COL, S_COL, S_T1))
    a("s_mov_b32 s%d, 5" % S_T1)
    a("s_branch K1_SET2")
    a.label("K1_SETGU")
    a("s_cmp_eq_u32 s%d, 0" % S_T2)
    a("s_cselect_b32 s%d, s%d, s%d" % (SRD_A, S_WG, S_WU))
    a("s_cselect_b32 s%d, s%d, s%d" % (SRD_A + 1, S_WG + 1, S_WU + 1))
    a("s_mov_b32 s%d, 0x%x" % (SRD_A + 2, 640 * 3456))
    a("s_mov_b32 s%d, 0x00020000" % (SRD_A + 3))
    a("s_movk_i32 s%d, 3456" % S_T0)
    a("s_sub_u32 s%d, s%d, 6" % (S_COL, S_N))
    a("s_mul_i32 s%d, s%d, 384" % (S_COL, S_COL))
    a("s_mov_b32 s%d, 6" % S_T1)
    a.label("K1_SET2")
    a("s_lshl_b32 s%d, s%d, 5" % (S_STRIDE32, S_T0))
    a("s_mul_i32 s%d, s%d, 19" % (S_LAST, S_STRIDE32))
    a("s_add_u32 s%d, s%d, s%d" % (S_LAST, S_LAST, S_COL))
    a("s_mov_b32 s%d, s%d" % (S_SOA, S_COL))
    a("v_bfrev_b32 v10, 1")
    for p in range(3):
        d = V_DW + p
        a("v_add_u32 v8, %d, v6" % (4 * p))
        a("v_cmp_le_u32 vcc, 6, v8")
        a("s_nop 1")
        a("v_cndmask_b32 v11, 0, 1, vcc")
        a("v_mul_u32_u24 v12, 6, v11")
        a("v_sub_u32 v8, v8, v12")
        a("v_lshl_add_u32 v11, v11, 2, v7")
        a("v_mul_lo_u32 v11, v11, s%d" % S_T0)
        a("v_lshl_add_u32 v12, v8, 6, v9")
        a("v_add_u32 v11, v11, v12")
        a("v_cmp_gt_u32 vcc, s%d, v8" % S_T1)
        a("s_nop 1")
        a("v_cndmask_b32 v%d, v10, v11, vcc" % d)
    issue(dma_w())
    if 'pf' in FL:
        a("s_lshl_b32 s%d, s%d, 6" % (S_T1, S_T3))
        a("v_add_u32 v8, s%d, v0" % S_T1)
        a("v_mul_u32_u24 v11, 21846, v8")
        a("v_lshrrev_b32 v11, 16, v11")
        a("v_mul_u32_u24 v12, 3, v11")
        a("v_sub_u32 v12, v8, v12")
        a("v_lshlrev_b32 v11, 3, v11")
        a("v_add_u32 v11, s69, v11")
        a("v_mul_lo_u32 v11, v11, s%d" % S_T0)
        a("v_lshl_add_u32 v11, v12, 7, v11")
        a("v_cmp_gt_u32 vcc, 240, v8")
        a("s_and_b32 s%d, s%d, 0xffffff80" % (S_T1, S_COL))
        a("s_nop 0")
        a("v_cndmask_b32 v11, v10, v11, vcc")
        a("buffer_load_dword v%d, v11, s[%d:%d], s%d offen" % (V_PF, SRD_A, SRD_A + 3, S_T1))
        a("v_and_b32 v8, 31, v%d" % V_T2)
        a("v_lshlrev_b32 v8, 2, v8")
        a("v_add_u32 v8, s65, v8")
        a("v_mul_u32_u24 v8, 1280, v8")
        a("v_lshrrev_b32 v11, 5, v%d" % V_T2)
        a("v_lshl_add_u32 v8, v11, 7, v8")
        a("v_cmp_gt_u32 vcc, 10, v11")
        a("s_nop 1")
        a("v_cndmask_b32 v8, v10, v8, vcc")
        a("buffer_load_dword v%d, v8, s[%d:%d], s%d offen" % (V_PF, SRD_X, SRD_X + 3, S_XROW))
    for x in dma_w_adv(): a(x)
    issue(dma_w())
    for x in dma_x_adv(): a(x)
    issue(dma_x())
    a("v_lshrrev_b32 v8, 5, v0")
    a("v_mul_u32_u24 v8, 3072, v8")
    a("v_bfe_u32 v9, v0, 2, 2")
    a("v_lshl_add_u32 v8, v9, 6, v8")
    a("v_bfe_u32 v9, v0, 4, 1")
    a("v_and_b32 v10, 3, v0")
    a("s_mul_i32 s%d, s%d, 12288" % (S_T0, S_WN))
    a("s_mul_i32 s%d, s%d, 768" % (S_T2, S_WN))
    a("s_cmp_lt_u32 s%d, 4" % S_N)
    a("s_cbranch_scc1 K1_AQK")
    a("v_lshl_add_u32 v11, v9, 5, v8")
    a("v_lshl_add_u32 v11, v10, 3, v11")
    a("s_cmp_lt_u32 s%d, 6" % S_N)
    a("s_cselect_b32 s%d, s%d, s%d" % (S_T0, S_T0, S_T2))
    a("v_add_u32 v%d, s%d, v11" % (V_WA, S_T0))
    a("s_branch K1_A2")
    a.label("K1_AQK")
    a("v_lshrrev_b32 v12, 1, v10")
    a("v_lshl_add_u32 v12, v9, 1, v12")
    a("v_lshl_add_u32 v12, v12, 3, v8")
    a("v_and_b32 v13, 1, v10")
    a("v_mul_u32_u24 v14, 544, v13")
    a("v_add3_u32 v%d, v12, v14, s%d" % (V_WA, S_T0))
    a("v_mul_u32_u24 v14, 736, v13")
    a("v_add_u32 v14, 32, v14")
    a("v_add3_u32 v%d, v12, v14, s%d" % (V_WA + 2, S_T0))
    a("v_xor_b32 v%d, 0xc000, v%d" % (V_WA + 3, V_WA + 2))
    a.label("K1_A2")
    a("v_xor_b32 v%d, 0xc000, v%d" % (V_WA + 1, V_WA))
    a("s_lshl_b32 s%d, s%d, 12" % (S_T0, S_WM))
    a("s_add_u32 s%d, s%d, %d" % (S_T0, S_T0, XB))
    a("v_and_b32 v8, 31, v0")
    a("v_lshlrev_b32 v8, 7, v8")
    a("v_add_u32 v8, s%d, v8" % S_T0)
    a("v_lshrrev_b32 v9, 5, v0")
    a("v_bfe_u32 v10, v0, 1, 3")
    for s in range(4):
        a("v_add_u32 v11, %d, v9" % (2 * s))
        a("v_xor_b32 v11, v11, v10")
        a("v_lshl_add_u32 v%d, v11, 4, v8" % (V_XA + s))
    for r in range(V_ACC, V_ACC + 96, 2):
        a("v_pk_mul_f32 v[%d:%d], 0, 0" % (r, r + 1) if False else "v_mov_b64 v[%d:%d], 0" % (r, r + 1))
    for r in range(V_CS, V_SXX + 2, 2):
        a("v_mov_b64 v[%d:%d], 0" % (r, r + 1))
    a("s_mov_b32 s%d, 0" % S_IT)
    a("s_mov_b32 s%d, 0" % S_XS)
    a("s_mov_b32 s%d, 16384" % S_T3)
    a("s_mov_b32 s%d, 16384" % S_XD)
    tstamp(a, 1)
    a("s_waitcnt vmcnt(%d)" % (7 if 'pf' in FL else 5))
    a("s_barrier")
    tstamp(a, 2)
    for x in dma_w_adv(): a(x)
    issue(dma_w())
    a("s_cmp_lt_u32 s%d, 4" % S_N)
    a("s_cbranch_scc1 K1_QK")
    a("s_cmp_lt_u32 s%d, 6" % S_N)
    a("s_cbranch_scc1 K1_V")
    for role in ("gu", "qk", "v"):
        a.label("K1_" + role.upper())
        NT = 6 if role == "gu" else 5
        a("ds_read_b128 v[%d:%d], v%d" % (V_XF, V_XF + 3, V_XA))
        a("v_add_u32 v%d, s%d, v%d" % (V_U + 6, S_WN8, V_XA))
        a("v_add_u32 v%d, s%d, v%d" % (V_XA, S_XD, V_XA))
        a("ds_read_b64 v[%d:%d], v%d" % (V_XS, V_XS + 1, V_U + 6))
        for f in range(NT):
            for x in wread(role, f, 0, False, False): a(x)
        jl = a.newlabel("K1J")
        labs = [a.newlabel("K1V") for _ in range(4)]
        for m in range(1, 4):
            a("s_cmp_eq_u32 s%d, %d" % (S_WM, m))
            a("s_cbranch_scc1 %s" % labs[m])
        for m in range(4):
            a.label(labs[m])
            k1_main_loop(a, role, m)
            if m < 3: a("s_branch %s" % jl)
        a.label(jl)
        tstamp(a, 3)
        k1_finish(a, role)
    k1_aux(a)
    a.label("K1_FIN")
    tsdump(a, 5, [0, 4, 254, 2], S_W)
    a.label("K1_END")
    a("s_endpgm")

def k1_finish(a, role):
    NT = 6 if role == "gu" else 5
    T = V_U
    a("s_waitcnt vmcnt(0) lgkmcnt(0)")
    a("s_barrier")
    a("v_and_b32 v%d, 31, v0" % T)
    a("v_lshlrev_b32 v%d, 2, v%d" % (T + 1, T))
    a("s_lshl_b32 s%d, s%d, 2" % (S_T0, S_WN))
    a("s_mul_i32 s%d, s%d, 768" % (S_T1, S_T0))
    a("s_add_u32 s%d, s%d, 4096" % (S_T1, S_T1))
    a("v_add_u32 v%d, s%d, v%d" % (T + 3, S_T1, T + 1))
    a("s_mul_i32 s%d, s%d, 768" % (S_T2, S_WM))
    a("v_add_u32 v%d, s%d, v%d" % (T + 2, S_T2, T + 3))
    for f in range(NT):
        c = V_CS + 2 * f
        a("v_add_f32 v%d, v%d, v%d" % (c, c, c + 1))
        halves_sum(a, c, T + 4)
        a("ds_write_b32 v%d, v%d offset:%d" % (T + 2, c, f * 128))
    a("v_add_f32 v%d, v%d, v%d" % (V_SX, V_SX, V_SX + 1))
    a("v_add_f32 v%d, v%d, v%d" % (V_SX + 1, V_SXX, V_SXX + 1))
    halves_sum(a, V_SX, T + 4)
    halves_sum(a, V_SX + 1, T + 4)
    a("s_lshl_b32 s%d, s%d, 8" % (S_T2, S_W))
    a("s_add_u32 s%d, s%d, 2048" % (S_T2, S_T2))
    a("v_lshlrev_b32 v%d, 3, v%d" % (T + 6, T))
    a("v_add_u32 v%d, s%d, v%d" % (T + 6, S_T2, T + 6))
    a("ds_write_b64 v%d, v[%d:%d]" % (T + 6, V_SX, V_SX + 1))
    a("v_xor_b32 v%d, 0x400, v%d" % (T + 6, T + 6))
    a("s_waitcnt lgkmcnt(0)")
    a("s_barrier")
    a("ds_read_b64 v[%d:%d], v%d" % (V_SXX, V_SXX + 1, T + 6))
    for f in range(NT):
        for m in range(4):
            a("ds_read_b32 v%d, v%d offset:%d" % (V_WF + f * 4 + m, T + 3, m * 768 + f * 128))
    a("s_waitcnt lgkmcnt(15)")
    a("v_add_f32 v%d, v%d, v%d" % (V_SX, V_SX, V_SXX))
    a("v_add_f32 v%d, v%d, v%d" % (V_SXX, V_SX + 1, V_SXX + 1))
    a("v_mul_f32 v%d, 0x%x, v%d" % (V_SX, f2u(1.0 / 640), V_SX))
    a("v_mul_f32 v%d, 0x%x, v%d" % (V_SXX, f2u(1.0 / 640), V_SXX))
    a("v_fma_f32 v%d, -v%d, v%d, v%d" % (V_SXX, V_SX, V_SX, V_SXX))
    a("v_max_f32 v%d, 0, v%d" % (V_SXX, V_SXX))
    rne_bf16_hi(a, V_SXX, V_SXX)
    a("v_add_f32 v%d, 0x%x, v%d" % (V_SXX, f2u(1e-5), V_SXX))
    rne_bf16_hi(a, V_SXX, V_SXX)
    a("v_sqrt_f32 v%d, v%d" % (V_SXX, V_SXX))
    a("s_nop 0")
    rne_bf16_hi(a, V_SXX, V_SXX)
    a("v_rcp_f32 v%d, v%d" % (V_T0, V_SXX))
    a("v_sub_f32 v%d, 0, v%d" % (V_SX, V_SX))
    a("v_cvt_pk_bf16_f32 v%d, v%d, v%d" % (V_SX, V_SX, V_SX))
    if role == "v":
        a("s_lshl_b32 s%d, s%d, 7" % (S_T2, S_W))
        a("v_add_u32 v%d, s%d, v%d" % (T + 5, S_T2, T + 1))
        a("ds_write_b32 v%d, v%d" % (T + 5, V_T0))
    a("v_cmp_gt_u32 vcc, 32, v0")
    xf = V_XF
    a("s_nop 1")
    a("v_cndmask_b32 v%d, 0, v%d, vcc" % (xf, V_SX))
    a("v_mov_b32 v%d, 0" % (xf + 2))
    a("v_mov_b32 v%d, 0" % (xf + 3))
    a("v_and_b32 v%d, 0xffff, v%d" % (xf + 1, xf))
    for f in range(NT):
        w = V_WF + f * 4
        a("s_waitcnt lgkmcnt(%d)" % (min(15, 4 * (NT - 1 - f)) if role != "v" else 0))
        a("v_add_f32 v%d, v%d, v%d" % (w, w, w + 1))
        a("v_add_f32 v%d, v%d, v%d" % (w + 2, w + 2, w + 3))
        a("v_add_f32 v%d, v%d, v%d" % (w + 2, w, w + 2))
        rne_bf16_hi(a, T + 4, w + 2)
        a("v_sub_f32 v%d, v%d, v%d" % (w + 2, w + 2, T + 4))
        rne_bf16_hi(a, T + 5, w + 2)
        a("v_sub_f32 v%d, v%d, v%d" % (w + 2, w + 2, T + 5))
        a("v_cvt_pk_bf16_f32 v%d, v%d, 0" % (w + 1, w + 2))
        a("v_lshrrev_b32 v%d, 16, v%d" % (T + 4, T + 4))
        a("v_or_b32 v%d, v%d, v%d" % (w, T + 4, T + 5))
        a("v_mov_b32 v%d, 0" % (w + 2))
        a("v_mov_b32 v%d, 0" % (w + 3))
    a("s_nop 1")
    for f in range(NT):
        a(mfma(role, f, xf))
    a("s_lshl_b32 s%d, s%d, 2" % (S_TILE, S_M))
    a("s_add_u32 s%d, s%d, s%d" % (S_TILE, S_TILE, S_WM))
    a("v_lshlrev_b32 v%d, 4, v0" % V_T2)
    tstamp(a, 4)
    {"gu": ep_gu, "qk": ep_qk, "v": ep_v}[role](a)
    a("s_branch K1_FIN")

def ep_gu(a):
    srd_off(a, SRD_O, S_WS, HF_OFF, HF_SZ)
    a("v_mul_f32 v%d, v%d, v%d" % (V_T0, V_T0, V_T0))
    a("s_sub_u32 s%d, s%d, 6" % (S_T0, S_N))
    a("s_mul_i32 s%d, s%d, 6" % (S_T0, S_T0))
    a("s_mul_i32 s%d, s%d, 3" % (S_T1, S_WN))
    a("s_add_u32 s%d, s%d, s%d" % (S_T0, S_T0, S_T1))
    a("s_lshl_b32 s%d, s%d, 11" % (S_T0, S_T0))
    a("s_mul_i32 s%d, s%d, %d" % (S_T1, S_TILE, 108 * 1024))
    a("s_add_u32 s%d, s%d, s%d" % (S_T1, S_T1, S_T0))
    a("s_nop 4")
    for j in range(3):
        g = accreg(j); u = accreg(3 + j)
        o = V_WF + j * 8
        for r in range(0, 16, 2):
            a("v_mul_f32 v%d, v%d, v%d" % (g + r, g + r, V_T0))
            a("v_mul_f32 v%d, v%d, v%d" % (g + r + 1, g + r + 1, V_T0))
            a("v_pk_mul_f32 v[%d:%d], v[%d:%d], v[%d:%d]" % (g + r, g + r + 1, g + r, g + r + 1, u + r, u + r + 1))
        for r in range(0, 16, 2):
            a("v_cvt_pk_bf16_f32 v%d, v%d, v%d" % (o + r // 2, g + r, g + r + 1))
        for t in range(2):
            a("buffer_store_dwordx4 v[%d:%d], v%d, s[%d:%d], s%d offen offset:%d" % (o + 4 * t, o + 4 * t + 3, V_T2, SRD_O, SRD_O + 3, S_T1, t * 1024))
        a("s_add_u32 s%d, s%d, 2048" % (S_T1, S_T1))

def ep_qk(a):
    a("s_and_b32 s%d, s%d, 1" % (S_T0, S_N))
    a("s_lshl_b32 s%d, s%d, 4" % (S_T0, S_T0))
    a("s_lshl_b32 s%d, s%d, 3" % (S_T1, S_WN))
    a("s_add_u32 s%d, s%d, s%d" % (S_T0, S_T0, S_T1))
    a("v_lshrrev_b32 v8, 5, v0")
    a("v_and_b32 v9, 31, v0")
    a("s_lshl_b32 s%d, s%d, 6" % (S_T1, S_T0))
    a("s_add_u32 s%d, s%d, s%d" % (S_T1, S_T1, S_TILE))
    a("s_cmp_lt_u32 s%d, 2" % S_N)
    a("s_cbranch_scc0 K1_EPK")
    srd_off(a, SRD_O, S_WS, QF_OFF, QF_SZ)
    a("v_mul_f32 v%d, 0x%x, v%d" % (V_T0, f2u(QSCALE), V_T0))
    a("s_mov_b32 s%d, %d" % (S_T2, 4 * 64 * 1536))
    a("v_mul_lo_u32 v10, v8, s%d" % S_T2)
    a("v_lshl_add_u32 v10, v9, 4, v10")
    a("s_mul_i32 s%d, s%d, 1536" % (S_T1, S_T1))
    def common(hh):
        b = V_ACC + hh * 20
        o = 12 + (hh % 2) * 12
        for r in range(20):
            a("v_mul_f32 v%d, v%d, v%d" % (b + r, b + r, V_T0))
        for r in range(10):
            a("v_cvt_pk_bf16_f32 v%d, v%d, v%d" % (o + r, b + 2 * r, b + 2 * r + 1))
        a("v_mul_f32 v%d, v%d, v%d" % (o + 10, b, b))
        for r in range(1, 20):
            a("v_fmac_f32 v%d, v%d, v%d" % (o + 10, b + r, b + r))
        return o
    for hh in range(4):
        o = common(hh)
        a("v_mov_b32 v%d, 0" % (o + 11))
        a("v_sqrt_f32 v%d, v%d" % (o + 10, o + 10))
        a("buffer_store_dwordx4 v[%d:%d], v10, s[%d:%d], s%d offen" % (o, o + 3, SRD_O, SRD_O + 3, S_T1))
        a("buffer_store_dwordx4 v[%d:%d], v10, s[%d:%d], s%d offen offset:512" % (o + 4, o + 7, SRD_O, SRD_O + 3, S_T1))
        a("buffer_store_dwordx4 v[%d:%d], v10, s[%d:%d], s%d offen offset:1024" % (o + 8, o + 11, SRD_O, SRD_O + 3, S_T1))
        a("s_add_u32 s%d, s%d, %d" % (S_T1, S_T1, 64 * 1536))
    a("s_branch K1_FIN")
    a.label("K1_EPK")
    srd_off(a, SRD_O, S_WS, KV_OFF, KV_SZ)
    srd_off(a, SRD_O2, S_WS, KNT_OFF, KNT_SZ)
    a("s_mov_b32 s%d, %d" % (S_T2, 4 * 64 * 2560))
    a("v_mul_lo_u32 v10, v8, s%d" % S_T2)
    a("v_lshl_add_u32 v11, v9, 3, v10")
    a("v_lshl_add_u32 v10, v9, 4, v10")
    a("v_lshlrev_b32 v36, 10, v8")
    a("s_lshl_b32 s%d, s%d, 2" % (S_T3, S_T1))
    a("s_mul_i32 s%d, s%d, 2560" % (S_T1, S_T1))
    for hh in range(4):
        o = common(hh)
        a("buffer_store_dwordx4 v[%d:%d], v10, s[%d:%d], s%d offen" % (o, o + 3, SRD_O, SRD_O + 3, S_T1))
        a("buffer_store_dwordx4 v[%d:%d], v10, s[%d:%d], s%d offen offset:512" % (o + 4, o + 7, SRD_O, SRD_O + 3, S_T1))
        a("buffer_store_dwordx2 v[%d:%d], v11, s[%d:%d], s%d offen offset:1024" % (o + 8, o + 9, SRD_O, SRD_O + 3, S_T1))
        m = o + 10
        for sh in (1, 2, 4, 8):
            a("s_nop 1")
            a("v_max_f32_dpp v%d, v%d, v%d row_ror:%d row_mask:0xf bank_mask:0xf" % (m, m, m, sh))
        a("v_mov_b32 v%d, v%d" % (o + 11, m))
        a("s_nop 1")
        a("v_permlane16_swap_b32 v%d, v%d" % (o + 11, m))
        a("s_nop 1")
        a("v_max_f32 v%d, v%d, v%d" % (m, m, o + 11))
        a("buffer_store_dword v%d, v36, s[%d:%d], s%d offen" % (m, SRD_O2, SRD_O2 + 3, S_T3))
        a("s_add_u32 s%d, s%d, %d" % (S_T1, S_T1, 64 * 2560))
        a("s_add_u32 s%d, s%d, 256" % (S_T3, S_T3))

def ep_v(a):
    srd_off(a, SRD_O, S_WS, KV_OFF, KV_SZ)
    a("v_lshrrev_b32 v8, 5, v0")
    a("v_lshlrev_b32 v9, 4, v8")
    a("s_lshl_b32 s%d, s%d, 7" % (S_T0, S_W))
    a("v_add_u32 v9, s%d, v9" % S_T0)
    for g in range(4):
        a("ds_read_b128 v[%d:%d], v9 offset:%d" % (12 + g * 4, 12 + g * 4 + 3, g * 32))
    a("s_and_b32 s%d, s%d, 1" % (S_T0, S_N))
    a("s_mul_i32 s%d, s%d, 320" % (S_T0, S_T0))
    a("s_mul_i32 s%d, s%d, 160" % (S_T1, S_WN))
    a("s_add_u32 s%d, s%d, s%d" % (S_T0, S_T0, S_T1))
    a("v_and_b32 v11, 31, v0")
    a("v_add_u32 v11, s%d, v11" % S_T0)
    a("v_mul_u32_u24 v8, 320, v8")
    a("s_movk_i32 s%d, 3277" % S_T2)
    a("s_mov_b32 s%d, %d" % (S_T3, 64 * 2560 - 320))
    for T in range(5):
        a("v_add_u32 v50, %d, v11" % (32 * T))
        a("v_mul_lo_u32 v51, v50, s%d" % S_T2)
        a("v_lshrrev_b32 v51, 16, v51")
        a("v_mul_lo_u32 v51, v51, s%d" % S_T3)
        a("v_lshl_add_u32 v51, v50, 4, v51")
        a("v_add_u32 v%d, v51, v8" % (44 + T))
    a("s_mul_i32 s%d, s%d, 2560" % (S_T1, S_TILE))
    a("s_add_u32 s%d, s%d, 1280" % (S_T1, S_T1))
    a("s_waitcnt lgkmcnt(0)")
    for T in range(5):
        b = V_ACC + T * 16
        for r in range(16):
            a("v_mul_f32 v%d, v%d, v%d" % (b + r, b + r, 12 + r))
        for r in range(8):
            a("v_cvt_pk_bf16_f32 v%d, v%d, v%d" % (b + r, b + 2 * r, b + 2 * r + 1))
        for t in range(2):
            a("buffer_store_dwordx4 v[%d:%d], v%d, s[%d:%d], s%d offen offset:%d" % (b + 4 * t, b + 4 * t + 3, 44 + T, SRD_O, SRD_O + 3, S_T1, t * 640))

def k1_aux(a):
    a.label("K1_AUX")
    tr_d = 20;
    srd(a, SRD_A, S_WD, 1728 * 1280)
    srd(a, SRD_B, S_WO, 640 * 1280)
    srd_off(a, SRD_O, S_WS, WDF_OFF, WDF_SZ)
    srd_off(a, SRD_O2, S_WS, WOF_OFF, WOF_SZ)
    a("s_lshl_b32 s%d, s%d, 3" % (S_T0, S_M))
    a("s_add_u32 s%d, s%d, s%d" % (S_IT, S_T0, S_W))
    a("v_bfe_u32 v8, v0, 2, 2")
    a("v_mul_u32_u24 v8, 1280, v8")
    a("v_lshrrev_b32 v9, 4, v0")
    a("v_lshl_add_u32 v8, v9, 6, v8")
    a("v_and_b32 v9, 3, v0")
    a("v_lshl_add_u32 v1, v9, 4, v8")
    a("v_bfe_u32 v8, v0, 2, 2")
    a("v_lshlrev_b32 v8, 6, v8")
    a("v_bfe_u32 v9, v0, 4, 1")
    a("v_lshl_add_u32 v8, v9, 5, v8")
    a("v_and_b32 v9, 3, v0")
    a("v_lshl_add_u32 v8, v9, 3, v8")
    a("s_lshl_b32 s%d, s%d, 13" % (S_LW, S_W))
    a("v_add_u32 v8, s%d, v8" % S_LW)
    a("v_lshrrev_b32 v9, 5, v0")
    a("v_lshl_add_u32 v2, v9, 10, v8")
    a("v_lshl_add_u32 v3, v9, 11, v8")
    a("v_lshlrev_b32 v4, 4, v0")
    L = "K1_AUXLOOP"
    a.label(L)
    a("s_cmp_ge_u32 s%d, 370" % S_IT)
    a("s_cbranch_scc1 K1_FIN")
    a("s_cmp_ge_u32 s%d, 270" % S_IT)
    a("s_cbranch_scc1 K1_AUXWO")
    for kind in ("wd", "wo"):
        if kind == "wo":
            a.label("K1_AUXWO")
            a("s_sub_u32 s%d, s%d, 270" % (S_T0, S_IT))
        else:
            a("s_mov_b32 s%d, s%d" % (S_T0, S_IT))
        a("s_mul_i32 s%d, s%d, 13108" % (S_T1, S_T0))
        a("s_lshr_b32 s%d, s%d, 16" % (S_T1, S_T1))
        a("s_mul_i32 s%d, s%d, 5" % (S_T2, S_T1))
        a("s_sub_u32 s%d, s%d, s%d" % (S_T2, S_T0, S_T2))
        a("s_mul_i32 s%d, s%d, %d" % (S_SOA, S_T1, 32 * 1280))
        a("s_lshl_b32 s%d, s%d, 8" % (S_T3, S_T2))
        a("s_add_u32 s%d, s%d, s%d" % (S_SOA, S_SOA, S_T3))
        sr_ = SRD_A if kind == "wd" else SRD_B
        for k4 in range(8):
            a("s_add_u32 m0, s%d, %d" % (S_LW, k4 * 1024))
            a("s_nop 0")
            a("buffer_load_dwordx4 v1, s[%d:%d], s%d offen lds" % (sr_, sr_ + 3, S_SOA))
            a("s_add_u32 s%d, s%d, %d" % (S_SOA, S_SOA, 4 * 1280))
        NS = 108 if kind == "wd" else 40
        so = SRD_O if kind == "wd" else SRD_O2
        a("s_mul_i32 s%d, s%d, %d" % (S_SOB, S_T2, 4 * NS * 1024))
        a("s_lshl_b32 s%d, s%d, 11" % (S_T3, S_T1))
        a("s_add_u32 s%d, s%d, s%d" % (S_SOB, S_SOB, S_T3))
        a("s_waitcnt vmcnt(0)")
        ar = 2 if kind == "wd" else 3
        for T in range(4):
            for t in range(2):
                d = 16 + (T * 2 + t) * 4
                for u in range(2):
                    k4c = (4 * t + 2 * u) if kind == "wd" else (4 * t + u)
                    a("ds_read_b64_tr_b16 v[%d:%d], v%d offset:%d" % (d + 2 * u, d + 2 * u + 1, ar, k4c * 1024 + T * 256))
        a("s_waitcnt lgkmcnt(0)")
        for T in range(4):
            for t in range(2):
                d = 16 + (T * 2 + t) * 4
                a("buffer_store_dwordx4 v[%d:%d], v4, s[%d:%d], s%d offen offset:%d" % (d, d + 3, so, so + 3, S_SOB, t * 1024))
            a("s_add_u32 s%d, s%d, %d" % (S_SOB, S_SOB, NS * 1024))
        a("s_add_u32 s%d, s%d, 128" % (S_IT, S_IT))
        a("s_waitcnt vmcnt(0)")
        a("s_branch %s" % L)
```

```python
from dsl import *
import os
from k1 import (QF_OFF, QF_SZ, KV_OFF, KV_SZ, KNT_OFF, KNT_SZ, HF_OFF, HF_SZ, WDF_OFF, WDF_SZ, OF_OFF, OF_SZ, BP_OFF, BP_SZ, f2u, tstamp, tsdump, FL)

NV = 224
PSTR = 656
LDS_D = 0
LDS_O = 4 * 32 * PSTR
LDS_F = LDS_O + 4 * 6144
K2_LDS = LDS_F + 4096

S_WS = 4
SRD_Q, SRD_KV, SRD_O, SRD_N = 8, 12, 16, 20
S_W, S_HEAD, S_QB, S_T0, S_T1, S_T2, S_T3 = 24, 25, 26, 27, 28, 29, 30
S_KV, S_KVL, S_IT = 31, 32, 33
S_VM = 34
S_QH, S_KK = 36, 37
S_TT, S_CG = 38, 39
S_X = 40

V_O, V_Q, V_S, V_P, V_KV = 16, 80, 112, 144, 152
V_AK0, V_AK1, V_AV = 1, 2, 3

def kvload(b):
    k = V_KV + b * 16
    return ["buffer_load_dwordx4 v[%d:%d], v%d, s[%d:%d], s%d offen" % (k, k + 3, V_AK0, SRD_KV, SRD_KV + 3, S_KV),
            "buffer_load_dwordx2 v[%d:%d], v%d, s[%d:%d], s%d offen" % (k + 4, k + 5, V_AK1, SRD_KV, SRD_KV + 3, S_KV),
            "s_mov_b64 exec, s[%d:%d]" % (S_VM, S_VM + 1),
            "buffer_load_dwordx4 v[%d:%d], v%d, s[%d:%d], s%d offen" % (k + 8, k + 11, V_AV, SRD_KV, SRD_KV + 3, S_KV),
            "buffer_load_dwordx4 v[%d:%d], v%d, s[%d:%d], s%d offen offset:640" % (k + 12, k + 15, V_AV, SRD_KV, SRD_KV + 3, S_KV),
            "s_mov_b64 exec, -1",
            "s_add_u32 s%d, s%d, 2560" % (S_KV, S_KV),
            "s_min_u32 s%d, s%d, s%d" % (S_KV, S_KV, S_KVL)]

def mf(d, a_, b_, c):
    cs = "0" if c is None else "v[%d:%d]" % (c, c + 15)
    return "v_mfma_f32_32x32x16_bf16 v[%d:%d], v[%d:%d], v[%d:%d], %s" % (d, d + 15, a_, a_ + 3, b_, b_ + 3, cs)

def s_mfma(n, part):
    n &= 15
    b, i = n >> 2, n & 3
    s = V_S + (n & 1) * 16
    k = V_KV + b * 16 + part * 4
    q = V_Q + i * 8 + part * 4
    return mf(s, k, q, None if part == 0 else s)

def pv_mfma(n, part):
    n &= 15
    b, i = n >> 2, n & 3
    v = V_KV + b * 16 + 8 + part * 4
    o = V_O + i * 16
    return mf(o, v, V_P + part * 4, o)

def attn_step(a, n):
    s = V_S + (n & 1) * 16
    E = lambda r: a("v_exp_f32 v%d, v%d" % (s + r, s + r))
    C = lambda r: a("v_cvt_pk_bf16_f32 v%d, v%d, v%d" % (V_P + r, s + 2 * r, s + 2 * r + 1))
    if (n & 3) == 3:
        a("s_waitcnt vmcnt(8)")
    a(s_mfma(n + 1, 0))
    for r in range(0, 4): E(r)
    a(pv_mfma(n - 1, 1))
    if (n & 3) == 0:
        for x in kvload(((n >> 2) - 1) & 3): a(x)
    for r in range(4, 8): E(r)
    a(s_mfma(n + 1, 1))
    for r in range(0, 4): C(r)
    for r in range(8, 12): E(r)
    a(pv_mfma(n, 0))
    for r in range(12, 16): E(r)
    for r in range(4, 8): C(r)

def wave_max(a, r, t):
    for sh in (1, 2, 4, 8):
        a("s_nop 1")
        a("v_max_f32_dpp v%d, v%d, v%d row_ror:%d row_mask:0xf bank_mask:0xf" % (r, r, r, sh))
    for ins in ("v_permlane16_swap_b32", "v_permlane32_swap_b32"):
        a("v_mov_b32 v%d, v%d" % (t, r))
        a("s_nop 1")
        a("%s v%d, v%d" % (ins, t, r))
        a("s_nop 1")
        a("v_max_f32 v%d, v%d, v%d" % (r, r, t))

def k2(a):
    a("s_cmp_ge_u32 s2, 256")
    a("s_cbranch_scc1 K2_END")
    tstamp(a, 0)
    a("s_load_dwordx2 s[4:5], s[0:1], 72")
    a("v_lshrrev_b32 v1, 6, v0")
    a("s_and_b32 s%d, s2, 7" % S_T0)
    a("s_lshr_b32 s%d, s2, 3" % S_T1)
    a("v_readfirstlane_b32 s%d, v1" % S_W)
    a("s_lshr_b32 s%d, s%d, 3" % (S_CG, S_T1))
    a("s_lshl_b32 s%d, s%d, 2" % (S_HEAD, S_T0))
    a("s_add_u32 s%d, s%d, s%d" % (S_HEAD, S_HEAD, S_CG))
    a("s_and_b32 s%d, s%d, 7" % (S_QB, S_T1))
    a("s_lshl_b32 s%d, s%d, 3" % (S_TT, S_T0))
    a("s_add_u32 s%d, s%d, s%d" % (S_TT, S_TT, S_QB))
    a("v_mov_b32 v15, v0")
    a("v_and_b32 v0, 63, v0")
    a("v_lshlrev_b32 v%d, 4, v0" % V_AK0)
    a("s_cmp_ge_u32 s%d, 4" % S_W)
    a("s_waitcnt lgkmcnt(0)")
    a("s_cbranch_scc1 K2_DOWN")
    srd_off(a, SRD_KV, S_WS, KV_OFF, KV_SZ)
    srd_off(a, SRD_Q, S_WS, QF_OFF, QF_SZ)
    srd_off(a, SRD_N, S_WS, KNT_OFF, KNT_SZ)
    a("s_and_b32 s%d, s%d, 1" % (S_QH, S_W))
    a("s_lshr_b32 s%d, s%d, 1" % (S_KK, S_W))
    a("v_and_b32 v4, 31, v0")
    a("v_lshrrev_b32 v5, 5, v0")
    a("v_lshlrev_b32 v%d, 3, v4" % V_AK1)
    a("v_add_u32 v%d, 1024, v%d" % (V_AK1, V_AK1))
    a("v_mul_u32_u24 v%d, 320, v5" % V_AV)
    a("v_lshl_add_u32 v%d, v4, 4, v%d" % (V_AV, V_AV))
    a("v_add_u32 v%d, 1280, v%d" % (V_AV, V_AV))
    a("s_mov_b32 s%d, 0x000fffff" % S_VM)
    a("s_mov_b32 s%d, 0x000fffff" % (S_VM + 1))
    for b in range(4):
        k = V_KV + b * 16
        a("v_mov_b32 v%d, 0x3f803f80" % (k + 6))
        a("v_mov_b32 v%d, 0x3f80" % (k + 7))
        for r in range(8, 16):
            a("v_mov_b32 v%d, 0x3f803f80" % (k + r))
    a("s_lshl_b32 s%d, s%d, 6" % (S_T0, S_HEAD))
    a("s_lshl_b32 s%d, s%d, 5" % (S_T1, S_KK))
    a("s_add_u32 s%d, s%d, s%d" % (S_T1, S_T1, S_T0))
    a("s_mul_i32 s%d, s%d, 2560" % (S_KV, S_T1))
    a("s_add_u32 s%d, s%d, %d" % (S_KVL, S_KV, 31 * 2560))
    a("s_mov_b32 s%d, s%d" % (S_X, S_KV))
    a("s_lshl_b32 s%d, s%d, 3" % (S_T1, S_QB))
    a("s_lshl_b32 s%d, s%d, 2" % (S_T2, S_QH))
    a("s_add_u32 s%d, s%d, s%d" % (S_T1, S_T1, S_T2))
    a("s_add_u32 s%d, s%d, s%d" % (S_T1, S_T1, S_T0))
    a("s_mul_i32 s%d, s%d, 1536" % (S_T1, S_T1))
    a("v_lshlrev_b32 v6, 4, v4")
    a("s_lshl_b32 s%d, s%d, 8" % (S_T2, S_HEAD))
    a("v_lshlrev_b32 v7, 2, v0")
    a("buffer_load_dword v8, v7, s[%d:%d], s%d offen" % (SRD_N, SRD_N + 3, S_T2))
    for i in range(4):
        q = V_Q + i * 8
        a("buffer_load_dwordx4 v[%d:%d], v%d, s[%d:%d], s%d offen" % (q, q + 3, V_AK0, SRD_Q, SRD_Q + 3, S_T1))
        a("buffer_load_dwordx4 v[%d:%d], v6, s[%d:%d], s%d offen offset:1024" % (q + 4, q + 7, SRD_Q, SRD_Q + 3, S_T1))
        a("s_add_u32 s%d, s%d, 1536" % (S_T1, S_T1))
    for b in range(3):
        for x in kvload(b): a(x)
    for r in range(0, 64, 2):
        a("v_mov_b64 v[%d:%d], 0" % (V_O + r, V_O + r + 1))
    for r in range(0, 8, 2):
        a("v_mov_b64 v[%d:%d], 0" % (V_P + r, V_P + r + 1))
    a("s_waitcnt vmcnt(12)")
    tstamp(a, 1)
    wave_max(a, 8, 9)
    a("v_sqrt_f32 v8, v8")
    a("s_nop 0")
    a("v_mul_f32 v8, 0x%x, v8" % f2u(1.03))
    a("v_cmp_gt_u32 vcc, 32, v0")
    for i in range(4):
        q = V_Q + i * 8
        a("v_mul_f32 v9, v8, v%d" % (q + 6))
        a("v_sub_f32 v9, 0, v9")
        a("v_cvt_pk_bf16_f32 v9, v9, 0")
        a("v_cndmask_b32 v%d, 0, v%d, vcc" % (q + 4, q + 4))
        a("v_cndmask_b32 v%d, 0, v%d, vcc" % (q + 5, q + 5))
        a("v_cndmask_b32 v%d, 0, v9, vcc" % (q + 6))
        a("v_mov_b32 v%d, 0" % (q + 7))
    a.label("K2_RUN")
    a("s_waitcnt vmcnt(8)")
    a("s_nop 1")
    a(s_mfma(0, 0))
    a(s_mfma(0, 1))
    a("s_mov_b32 s%d, 0" % S_IT)
    a("s_nop 7")
    a("s_nop 3")
    a.label("K2_LOOP")
    for n in range(16):
        attn_step(a, n)
    a("s_add_u32 s%d, s%d, 1" % (S_IT, S_IT))
    a("s_cmp_lt_u32 s%d, 8" % S_IT)
    a("s_cbranch_scc1 K2_LOOP")
    a(pv_mfma(15, 1))
    tstamp(a, 2)
    a("s_mul_i32 s%d, s%d, 6144" % (S_T0, S_W))
    a("s_add_u32 s%d, s%d, %d" % (S_T0, S_T0, LDS_O))
    a("v_lshlrev_b32 v4, 2, v0")
    a("v_add_u32 v4, s%d, v4" % S_T0)
    a("s_xor_b32 s%d, s%d, 2" % (S_T1, S_W))
    a("s_mul_i32 s%d, s%d, 6144" % (S_T1, S_T1))
    a("s_add_u32 s%d, s%d, %d" % (S_T1, S_T1, LDS_O))
    a("v_lshlrev_b32 v5, 2, v0")
    a("v_add_u32 v5, s%d, v5" % S_T1)
    a("s_cmp_eq_u32 s%d, 0" % S_KK)
    a("s_nop 4")
    a("s_cbranch_scc1 K2_X0")
    for t in range(2):
        for r in range(12):
            a("ds_write_b32 v4, v%d offset:%d" % (V_O + t * 16 + r, (t * 12 + r) * 256))
    for t in range(2):
        for r in range(12):
            a("v_mov_b32 v%d, v%d" % (V_O + t * 16 + r, V_O + (t + 2) * 16 + r))
    a("s_branch K2_X1")
    a.label("K2_X0")
    for t in range(2):
        for r in range(12):
            a("ds_write_b32 v4, v%d offset:%d" % (V_O + (t + 2) * 16 + r, (t * 12 + r) * 256))
    a.label("K2_X1")
    a("s_waitcnt lgkmcnt(0) vmcnt(0)")
    a("s_barrier")
    for t in range(2):
        for r in range(12):
            a("ds_read_b32 v%d, v5 offset:%d" % (V_S + t * 12 + r, (t * 12 + r) * 256))
    srd_off(a, SRD_O, S_WS, OF_OFF, OF_SZ)
    a("v_lshrrev_b32 v5, 5, v0")
    a("v_and_b32 v4, 31, v0")
    a("s_mul_i32 s%d, s%d, 20" % (S_T0, S_HEAD))
    for j in range(3):
        d = 6 + j
        if j < 2:
            a("v_lshlrev_b32 v9, 2, v5")
            a("v_add_u32 v9, %d, v9" % (8 * j))
        else:
            a("v_mov_b32 v9, 16")
        a("v_add_u32 v9, s%d, v9" % S_T0)
        a("v_lshrrev_b32 v10, 3, v9")
        a("v_lshlrev_b32 v10, 9, v10")
        a("v_and_b32 v11, 7, v9")
        a("v_lshl_add_u32 v10, v11, 1, v10")
        a("v_lshl_add_u32 v%d, v4, 4, v10" % d)
    a("v_bfrev_b32 v9, 1")
    a("v_cmp_gt_u32 vcc, 32, v0")
    a("s_nop 1")
    a("v_cndmask_b32 v8, v9, v8, vcc")
    a("s_lshl_b32 s%d, s%d, 3" % (S_T1, S_QB))
    a("s_lshl_b32 s%d, s%d, 2" % (S_T2, S_QH))
    a("s_add_u32 s%d, s%d, s%d" % (S_T1, S_T1, S_T2))
    a("s_lshl_b32 s%d, s%d, 1" % (S_T2, S_KK))
    a("s_add_u32 s%d, s%d, s%d" % (S_T1, S_T1, S_T2))
    a("s_mul_i32 s%d, s%d, 40960" % (S_T1, S_T1))
    a("s_waitcnt lgkmcnt(0)")
    for t in range(2):
        o = V_O + t * 16
        for r in range(12):
            a("v_add_f32 v%d, v%d, v%d" % (o + r, o + r, V_S + t * 12 + r))
        a("v_mov_b32 v9, v%d" % (o + 8))
        a("v_mov_b32 v10, v%d" % (o + 8))
        a("s_nop 1")
        a("v_permlane32_swap_b32 v9, v10")
        a("s_nop 1")
        a("v_rcp_f32 v10, v10")
        a("s_nop 0")
        for r in range(12):
            a("v_mul_f32 v%d, v%d, v10" % (o + r, o + r))
        for r in range(6):
            a("v_cvt_pk_bf16_f32 v%d, v%d, v%d" % (V_P + r, o + 2 * r, o + 2 * r + 1))
        for j in range(3):
            a("buffer_store_dwordx2 v[%d:%d], v%d, s[%d:%d], s%d offen" % (V_P + 2 * j, V_P + 2 * j + 1, 6 + j, SRD_O, SRD_O + 3, S_T1))
        a("s_add_u32 s%d, s%d, 40960" % (S_T1, S_T1))
        a("s_nop 1")
    a("s_branch K2_FIN")
    a.label("K2_DOWN")
    SRD_H, SRD_W = SRD_Q, SRD_KV
    srd_off(a, SRD_H, S_WS, HF_OFF, HF_SZ)
    srd_off(a, SRD_W, S_WS, WDF_OFF, WDF_SZ)
    a("s_sub_u32 s%d, s%d, 4" % (S_W, S_W))
    DA, DB = 16, 96
    a("s_mul_i32 s%d, s%d, 27" % (S_T0, S_W))
    a("s_mul_i32 s%d, s%d, 108" % (S_T1, S_TT))
    a("s_add_u32 s%d, s%d, s%d" % (S_T1, S_T1, S_T0))
    a("s_lshl_b32 s%d, s%d, 10" % (S_KV, S_T1))
    a("s_mul_i32 s%d, s%d, 540" % (S_T1, S_CG))
    a("s_add_u32 s%d, s%d, s%d" % (S_T1, S_T1, S_T0))
    a("s_lshl_b32 s%d, s%d, 10" % (S_X, S_T1))
    a("s_add_u32 s%d, s%d, %d" % (S_KVL, S_KV, 26 * 1024))
    a("s_add_u32 s%d, s%d, %d" % (S_T3, S_X, 26 * 1024))
    for T in range(5):
        a("v_add_u32 v%d, 0x%x, v%d" % (2 + T, T * 108 * 1024, V_AK0))
    def dload(b):
        r = DB + b * 24
        L = ["buffer_load_dwordx4 v[%d:%d], v%d, s[%d:%d], s%d offen" % (r, r + 3, V_AK0, SRD_H, SRD_H + 3, S_KV)]
        for T in range(5):
            L.append("buffer_load_dwordx4 v[%d:%d], v%d, s[%d:%d], s%d offen" % (r + 4 + 4 * T, r + 7 + 4 * T, 2 + T, SRD_W, SRD_W + 3, S_X))
        L += ["s_add_u32 s%d, s%d, 1024" % (S_KV, S_KV), "s_min_u32 s%d, s%d, s%d" % (S_KV, S_KV, S_KVL),
              "s_add_u32 s%d, s%d, 1024" % (S_X, S_X), "s_min_u32 s%d, s%d, s%d" % (S_X, S_X, S_T3)]
        return L
    for b in range(3):
        for x in dload(b): a(x)
    for r in range(0, 80, 2):
        a("v_mov_b64 v[%d:%d], 0" % (DA + r, DA + r + 1))
    a("s_mov_b32 s%d, 0" % S_IT)
    a.label("K2_DLOOP")
    for b in range(3):
        r = DB + b * 24
        a("s_waitcnt vmcnt(12)")
        for T in range(5):
            a(mf(DA + T * 16, r + 4 + 4 * T, r, DA + T * 16))
        for x in dload(b): a(x)
    a("s_add_u32 s%d, s%d, 1" % (S_IT, S_IT))
    a("s_cmp_lt_u32 s%d, 9" % S_IT)
    a("s_cbranch_scc1 K2_DLOOP")
    tstamp(a, 1)
    a("v_and_b32 v4, 31, v0")
    a("v_lshrrev_b32 v5, 5, v0")
    a("v_mul_u32_u24 v4, %d, v4" % PSTR)
    a("v_lshl_add_u32 v4, v5, 4, v4")
    a("s_mul_i32 s%d, s%d, %d" % (S_T0, S_W, 32 * PSTR))
    a("v_add_u32 v4, s%d, v4" % S_T0)
    a("s_nop 7")
    a("s_nop 3")
    for T in range(5):
        for g in range(4):
            r = DA + T * 16 + g * 4
            a("ds_write_b128 v4, v[%d:%d] offset:%d" % (r, r + 3, T * 128 + g * 32))
    a("s_waitcnt lgkmcnt(0) vmcnt(0)")
    tstamp(a, 2)
    a("s_barrier")
    srd_off(a, SRD_O, S_WS, BP_OFF, BP_SZ)
    a("v_and_b32 v15, 255, v15")
    a("s_mul_i32 s%d, s%d, %d" % (S_T0, S_TT, 32 * 1280))
    a("s_mul_i32 s%d, s%d, 320" % (S_T1, S_CG))
    a("s_add_u32 s%d, s%d, s%d" % (S_T0, S_T0, S_T1))
    for it in range(3):
        a("v_add_u32 v4, %d, v15" % (256 * it))
        a("s_movk_i32 s%d, 3277" % S_T1)
        a("v_mul_lo_u32 v5, v4, s%d" % S_T1)
        a("v_lshrrev_b32 v5, 16, v5")
        a("v_mul_u32_u24 v6, 20, v5")
        a("v_sub_u32 v6, v4, v6")
        a("v_mul_u32_u24 v7, %d, v5" % PSTR)
        a("v_lshl_add_u32 v7, v6, 5, v7")
        a("v_mul_u32_u24 v8, 1280, v5")
        a("v_lshl_add_u32 v8, v6, 4, v8")
        if it == 2:
            a("v_cmp_gt_u32 vcc, 640, v4")
            a("v_bfrev_b32 v9, 1")
            a("s_nop 0")
            a("v_cndmask_b32 v8, v9, v8, vcc")
            a("v_cndmask_b32 v7, 0, v7, vcc")
        for m in range(4):
            a("ds_read_b128 v[%d:%d], v7 offset:%d" % (16 + m * 8, 19 + m * 8, m * 32 * PSTR))
            a("ds_read_b128 v[%d:%d], v7 offset:%d" % (20 + m * 8, 23 + m * 8, m * 32 * PSTR + 16))
        a("s_waitcnt lgkmcnt(0)")
        for r in range(8):
            a("v_add_f32 v%d, v%d, v%d" % (16 + r, 16 + r, 24 + r))
            a("v_add_f32 v%d, v%d, v%d" % (32 + r, 32 + r, 40 + r))
            a("v_add_f32 v%d, v%d, v%d" % (16 + r, 16 + r, 32 + r))
        for r in range(4):
            a("v_cvt_pk_bf16_f32 v%d, v%d, v%d" % (48 + it * 4 + r, 16 + 2 * r, 17 + 2 * r))
        a("buffer_store_dwordx4 v[%d:%d], v8, s[%d:%d], s%d offen" % (48 + it * 4, 51 + it * 4, SRD_O, SRD_O + 3, S_T0))
    a("s_add_u32 s%d, s%d, 4" % (S_W, S_W))
    a.label("K2_FIN")
    n = 3
    if True:
        a("s_cmp_eq_u32 s%d, 4" % S_W)
        a("s_cselect_b32 s41, 9, s2")
        a("s_cmp_eq_u32 s2, 0")
        a("s_cselect_b32 s2, s41, 1000")
        a("s_cmp_eq_u32 s%d, 4" % S_W)
        a("s_cselect_b32 s%d, 0, s%d" % (S_W, S_W))
        tsdump(a, n, [0, 9], S_W)
    a.label("K2_END")
    a("s_endpgm")
```

```python
from dsl import *
from k1 import (WOF_OFF, WOF_SZ, OF_OFF, OF_SZ, BP_OFF, BP_SZ, tstamp, tsdump, FL)
NV = 248
PSTR = 656
K3_LDS = 4 * 32 * PSTR
SRD_O, SRD_W, SRD_X, SRD_B, SRD_D = 8, 12, 16, 20, 24
S_W, S_TT, S_CG, S_T0, S_T1, S_OO, S_WO = 28, 29, 30, 31, 32, 33, 34
DA, DX, DB = 16, 96, 120
DEPTH = 5

def mf(d, a_, b_, c):
    cs = "0" if c is None else "v[%d:%d]" % (c, c + 15)
    return "v_mfma_f32_32x32x16_bf16 v[%d:%d], v[%d:%d], v[%d:%d], %s" % (d, d + 15, a_, a_ + 3, b_, b_ + 3, cs)

def k3(a):
    a("s_cmp_ge_u32 s2, 256")
    a("s_cbranch_scc1 K3_END")
    tstamp(a, 0)
    a("s_load_dwordx2 s[4:5], s[0:1], 72")
    a("s_load_dwordx2 s[6:7], s[0:1], 0")
    a("s_load_dwordx2 s[36:37], s[0:1], 56")
    a("v_lshrrev_b32 v1, 6, v0")
    a("s_and_b32 s%d, s2, 7" % S_T0)
    a("s_lshr_b32 s%d, s2, 3" % S_T1)
    a("v_readfirstlane_b32 s%d, v1" % S_W)
    a("s_lshr_b32 s%d, s%d, 3" % (S_CG, S_T1))
    a("s_and_b32 s%d, s%d, 7" % (S_T1, S_T1))
    a("s_lshl_b32 s%d, s%d, 3" % (S_TT, S_T0))
    a("s_add_u32 s%d, s%d, s%d" % (S_TT, S_TT, S_T1))
    a("v_and_b32 v1, 63, v0")
    a("v_lshlrev_b32 v1, 4, v1")
    for T in range(5):
        a("v_add_u32 v%d, 0x%x, v1" % (2 + T, T * 40 * 1024))
    a("s_mul_i32 s%d, s%d, 10" % (S_T0, S_W))
    a("s_mul_i32 s%d, s%d, 40" % (S_T1, S_TT))
    a("s_add_u32 s%d, s%d, s%d" % (S_T1, S_T1, S_T0))
    a("s_lshl_b32 s%d, s%d, 10" % (S_OO, S_T1))
    a("s_mul_i32 s%d, s%d, 200" % (S_T1, S_CG))
    a("s_add_u32 s%d, s%d, s%d" % (S_T1, S_T1, S_T0))
    a("s_lshl_b32 s%d, s%d, 10" % (S_WO, S_T1))
    a("s_waitcnt lgkmcnt(0)")
    srd_off(a, SRD_W, 4, WOF_OFF, WOF_SZ)
    srd_off(a, SRD_O, 4, OF_OFF, OF_SZ)
    def dload(b, step):
        r = DB + b * 24
        L = []
        for T in range(5):
            L.append("buffer_load_dwordx4 v[%d:%d], v%d, s[%d:%d], s%d offen offset:%d" % (r + 4 + 4 * T, r + 7 + 4 * T, 2 + T, SRD_W, SRD_W + 3, S_WO, (step & 3) * 1024))
        L.append("buffer_load_dwordx4 v[%d:%d], v1, s[%d:%d], s%d offen offset:%d" % (r, r + 3, SRD_O, SRD_O + 3, S_OO, (step & 3) * 1024))
        if (step & 3) == 3:
            L += ["s_add_u32 s%d, s%d, 4096" % (S_WO, S_WO), "s_add_u32 s%d, s%d, 4096" % (S_OO, S_OO)]
        return L
    for b in range(DEPTH):
        for x in dload(b, b): a(x)
    srd_off(a, SRD_B, 4, BP_OFF, BP_SZ)
    srd(a, SRD_X, 6, 2048 * 1280)
    srd(a, SRD_D, 36, 2048 * 1280)
    a("s_mul_i32 s%d, s%d, %d" % (S_T0, S_TT, 32 * 1280))
    a("s_mul_i32 s%d, s%d, 320" % (S_T1, S_CG))
    a("s_add_u32 s%d, s%d, s%d" % (S_T0, S_T0, S_T1))
    a("s_movk_i32 s%d, 3277" % S_T1)
    a("v_bfrev_b32 v15, 1")
    for it in range(3):
        a("v_add_u32 v7, %d, v0" % (256 * it))
        a("v_mul_lo_u32 v8, v7, s%d" % S_T1)
        a("v_lshrrev_b32 v8, 16, v8")
        a("v_mul_u32_u24 v9, 20, v8")
        a("v_sub_u32 v9, v7, v9")
        a("v_mul_u32_u24 v%d, %d, v8" % (10 + it, PSTR))
        a("v_lshl_add_u32 v%d, v9, 5, v%d" % (10 + it, 10 + it))
        a("v_mul_u32_u24 v8, 1280, v8")
        a("v_lshl_add_u32 v%d, v9, 4, v8" % (240 + it))
        if it == 2:
            a("v_cmp_gt_u32 vcc, 640, v7")
            a("s_nop 1")
            a("v_cndmask_b32 v242, v15, v242, vcc")
            a("v_cndmask_b32 v12, 0, v12, vcc")
        a("buffer_load_dwordx4 v[%d:%d], v%d, s[%d:%d], s%d offen" % (DX + it * 8, DX + it * 8 + 3, 240 + it, SRD_B, SRD_B + 3, S_T0))
        a("buffer_load_dwordx4 v[%d:%d], v%d, s[%d:%d], s%d offen" % (DX + it * 8 + 4, DX + it * 8 + 7, 240 + it, SRD_X, SRD_X + 3, S_T0))
    for step in range(10):
        b = step % DEPTH
        r = DB + b * 24
        if step < DEPTH:
            rem = (DEPTH - 1 - step) * 6 + 6 + step * 6
        else:
            rem = (9 - step) * 6
        a("s_waitcnt vmcnt(%d)" % rem)
        for T in range(5):
            a(mf(DA + T * 16, r + 4 + 4 * T, r, None if step == 0 else DA + T * 16))
        if step + DEPTH < 10:
            for x in dload(b, step + DEPTH): a(x)
    tstamp(a, 1)
    a("v_and_b32 v7, 31, v0")
    a("v_bfe_u32 v8, v0, 5, 1")
    a("v_mul_u32_u24 v7, %d, v7" % PSTR)
    a("v_lshl_add_u32 v7, v8, 4, v7")
    a("s_mul_i32 s%d, s%d, %d" % (S_T1, S_W, 32 * PSTR))
    a("v_add_u32 v7, s%d, v7" % S_T1)
    a("s_nop 7")
    a("s_nop 3")
    for T in range(5):
        for g in range(4):
            r = DA + T * 16 + g * 4
            a("ds_write_b128 v7, v[%d:%d] offset:%d" % (r, r + 3, T * 128 + g * 32))
    a("s_waitcnt lgkmcnt(0)")
    a("s_barrier")
    tstamp(a, 2)
    for it in range(3):
        R = DB + it * 32
        for m in range(4):
            a("ds_read_b128 v[%d:%d], v%d offset:%d" % (R + m * 8, R + 3 + m * 8, 10 + it, m * 32 * PSTR))
            a("ds_read_b128 v[%d:%d], v%d offset:%d" % (R + 4 + m * 8, R + 7 + m * 8, 10 + it, m * 32 * PSTR + 16))
    for it in range(3):
        R = DB + it * 32
        a("s_waitcnt lgkmcnt(%d)" % (8 * (2 - it) if it > 0 else 15))
        for r in range(8):
            a("v_add_f32 v%d, v%d, v%d" % (R + r, R + r, R + 8 + r))
            a("v_add_f32 v%d, v%d, v%d" % (R + 16 + r, R + 16 + r, R + 24 + r))
            a("v_add_f32 v%d, v%d, v%d" % (R + r, R + r, R + 16 + r))
        B = DX + it * 8; X = B + 4
        for r in range(4):
            a("v_cvt_pk_bf16_f32 v%d, v%d, v%d" % (R + 8 + r, R + 2 * r, R + 2 * r + 1))
        for r in range(4):
            A = R + 8 + r
            a("v_lshlrev_b32 v7, 16, v%d" % A)
            a("v_and_b32 v8, 0xffff0000, v%d" % A)
            a("v_lshlrev_b32 v9, 16, v%d" % (X + r))
            a("v_and_b32 v13, 0xffff0000, v%d" % (X + r))
            a("v_add_f32 v7, v7, v9")
            a("v_add_f32 v8, v8, v13")
            a("v_cvt_pk_bf16_f32 v7, v7, v8")
            a("v_lshlrev_b32 v9, 16, v%d" % (B + r))
            a("v_and_b32 v13, 0xffff0000, v%d" % (B + r))
            a("v_and_b32 v8, 0xffff0000, v7")
            a("v_lshlrev_b32 v7, 16, v7")
            a("v_add_f32 v7, v7, v9")
            a("v_add_f32 v8, v8, v13")
            a("v_cvt_pk_bf16_f32 v%d, v7, v8" % (R + 16 + r))
        a("buffer_store_dwordx4 v[%d:%d], v%d, s[%d:%d], s%d offen" % (R + 16, R + 19, 240 + it, SRD_D, SRD_D + 3, S_T0))
    tsdump(a, 3, [0, 9], S_W)
    a.label("K3_END")
    a("s_endpgm")
```

```python
import sys
from dsl import *
import k1, importlib
NAME = "parallel_sum__mha_block__glu_gated_bilinear__prompt"
hdr = open("cdna_kernels/%s.s.ref" % NAME).read().split("\n")
kern = [l for l in hdr if l.startswith(";   offset") or l.startswith("; Kernarg")]
which = sys.argv[1].split(",") if len(sys.argv) > 1 else ["k1", "k2", "k3"]
out = sys.argv[2] if len(sys.argv) > 2 else "cdna_kernels/%s.s" % NAME
K = []
if "k1" in which: K.append(("mha_k1_kernel", 256, 512, k1.K1_LDS, k1.k1, k1.K1_NV, k1.K1_NV))
if "k2" in which:
    import k2
    K.append(("mha_k2_kernel", 256, 512, k2.K2_LDS, k2.k2, k2.NV, k2.NV))
if "k3" in which:
    import k3
    K.append(("mha_k3_kernel", 256, 256, k3.K3_LDS, k3.k3, k3.NV, k3.NV))
txt = "\n".join(kern) + "\n"
for (n, g, b, lds, fn, nv, ao) in K:
    txt += "; @launch kernel=%s grid=(%d,1,1) block=(%d,1,1) lds=%d\n" % (n, g, b, lds)
txt += '.amdgcn_target "amdgcn-amd-amdhsa--gfx950"\n.text\n'
for (n, g, b, lds, fn, nv, ao) in K:
    a = Asm()
    a.lab = 1000 * (1 + [k[0] for k in K].index(n))
    fn(a)
    txt += ".globl %s\n.p2align 8\n.type %s,@function\n%s:\n" % (n, n, n) + a.text()
txt += '.section .rodata,"a"\n'
for (n, g, b, lds, fn, nv, ao) in K:
    txt += """.p2align 6
.amdhsa_kernel %s
  .amdhsa_next_free_vgpr %d
  .amdhsa_next_free_sgpr 102
  .amdhsa_accum_offset %d
  .amdhsa_group_segment_fixed_size 0
  .amdhsa_kernarg_size 80
  .amdhsa_user_sgpr_count 2
  .amdhsa_user_sgpr_kernarg_segment_ptr 1
  .amdhsa_system_sgpr_workgroup_id_x 1
.end_amdhsa_kernel
""" % (n, nv, ao)
open(out, "w").write(txt)
print("wrote", out, len(txt), "bytes")
```

```python
from dsl import *
import os
FL = os.environ.get('FL', '').split(',')

QF_OFF  = 0x000000; QF_SZ  = 32*64*1536
KVT = 2624
KV_OFF  = 0x300000; KV_SZ  = 32*64*KVT
KNT_OFF = 0x8F0000; KNT_SZ = 32*64*4
HF_OFF  = 0x900000; HF_SZ  = 64*108*1024
WDF_OFF = 0x1000000; WDF_SZ = 20*108*1024
WOF_OFF = 0x1300000; WOF_SZ = 20*40*1024
OF_OFF  = 0x1400000; OF_SZ  = 64*40*1024
BP_OFF  = 0x1800000; BP_SZ  = 2048*640*2

WST = 24576
XB  = 98304
K1_LDS = XB + 3*16384


import struct
def f2u(x): return struct.unpack("<I", struct.pack("<f", x))[0]
QSCALE = (20 ** -0.5) * 1.4426950408889634

S_X, S_WQKV, S_WO, S_WG, S_WU, S_WD, S_WS = 4, 6, 8, 10, 12, 14, 16
SRD_A, SRD_B, SRD_X, SRD_O = 20, 24, 28, 32
S_M, S_N, S_W, S_WM, S_WN = 36, 37, 38, 39, 40
S_SOA, S_SOB, S_SOX = 41, 42, 43
S_STRIDE32 = 44
S_WT = 45
S_XT = 46
S_WN8 = 45
S_LW = 47
S_LX = 48
S_IT = 49
S_XD = 50
S_XS = 51
S_MASK = 52
S_LAST = 53
S_T0, S_T1, S_T2, S_T3 = 54, 55, 56, 57
S_COL = 58
S_LWB = 59
S_XROW = 60
S_XSLOT = 61
S_TILE = 62
S_LXB = 63
SRD_O2 = 64

V_DW = 1
V_DX = 4
V_T0, V_T1 = 6, 7
V_WF = 8
V_XF = 32
V_U = 40
V_CS = 48
V_SX = 60
V_SXX = 62
V_WA = 64
V_XA = 68
V_T2 = 72
V_PF = 73
V_XS = 74
V_ACC = 80
V_XR = 176
V_XW = 74
V_SA = 76
V_PK = 48
S_XI = 68
K1_NV = 256

TS = os.environ.get("TS", "1") == "1"
KIDX = [0]
def tstamp(a, i):
    if TS:
        if i == 0: a("s_memrealtime s[88:89]")
        a("s_memtime s[%d:%d]" % (70 + 2 * i, 71 + 2 * i))

def tsdump(a, n, ids, wreg):
    if not TS: return
    l = a.newlabel("TSD")
    a("s_waitcnt vmcnt(0) lgkmcnt(0)")
    tstamp(a, n)
    a("s_memrealtime s[94:95]")
    a("s_load_dwordx2 s[90:91], s[0:1], 64")
    a("s_load_dwordx2 s[96:97], s[0:1], 72")
    a("s_waitcnt lgkmcnt(0)")
    l2 = a.newlabel("TSE")
    a("s_cmp_lg_u32 s%d, 0" % wreg)
    a("s_cbranch_scc1 %s" % l2)
    a("s_add_u32 s96, s96, 0x%x" % (0x2000000 + KIDX[0] * 0x1000)); a("s_addc_u32 s97, s97, 0")
    KIDX[0] += 1
    a("s_mov_b32 s98, 0x1000"); a("s_mov_b32 s99, 0x00020000")
    a("v_mov_b32 v2, s88"); a("v_mov_b32 v3, s94"); a("s_and_b32 s93, s2, 255"); a("s_lshl_b32 s93, s93, 3"); a("v_mov_b32 v4, 0")
    a("buffer_store_dwordx2 v[2:3], v4, s[96:99], s93 offen")
    a.label(l2)
    a("s_mov_b32 s92, -1")
    for r, i in enumerate(ids):
        a("s_cmp_eq_u32 s2, %d" % i); a("s_cselect_b32 s92, %d, s92" % (32 * r))
    a("s_cmp_lg_u32 s%d, 0" % wreg); a("s_cselect_b32 s92, -1, s92")
    a("s_cmp_lt_i32 s92, 0")
    a("s_cbranch_scc1 %s" % l)
    a("s_mov_b32 s96, s90"); a("s_mov_b32 s97, s91"); a("s_mov_b32 s98, 256"); a("s_mov_b32 s99, 0x00020000")
    for i in range(1, n + 1):
        a("s_sub_u32 s93, s%d, s70" % (70 + 2 * i))
        a("v_mov_b32 v1, s93")
        a("v_mov_b32 v2, s92")
        a("buffer_store_dword v1, v2, s[96:99], 0 offen offset:%d" % (4 * (i - 1)))
    a("s_waitcnt vmcnt(0)")
    a.label(l)

def dma_w():
    return [["s_add_u32 m0, s%d, %d" % (S_LW, p * 1024),
             "buffer_load_dwordx4 v%d, s[%d:%d], s%d offen lds" % (V_DW + p, SRD_A, SRD_A + 3, S_SOA)] for p in range(3)]

def dma_w_adv():
    return ["s_add_u32 s%d, s%d, %d" % (S_LW, S_LW, WST),
            "s_cmp_ge_u32 s%d, s%d" % (S_LW, 66),
            "s_cselect_b32 s%d, s%d, s%d" % (S_LW, S_LWB, S_LW),
            "s_add_u32 s%d, s%d, s%d" % (S_SOA, S_SOA, S_STRIDE32),
            "s_min_u32 s%d, s%d, s%d" % (S_SOA, S_SOA, S_LAST)]

def dma_x():
    return [["s_add_u32 m0, s%d, %d" % (S_LX, ip * 1024),
             "buffer_load_dwordx4 v%d, s[%d:%d], s%d offen lds" % (V_DX + ip, SRD_X, SRD_X + 3, S_SOX)] for ip in range(2)]

def dma_x_adv():
    return ["s_add_u32 s%d, s%d, 16384" % (S_LX, S_LX),
            "s_cmp_ge_u32 s%d, s67" % S_LX,
            "s_cselect_b32 s%d, s%d, s%d" % (S_LX, S_LXB, S_LX),
            "s_add_u32 s%d, s%d, 128" % (S_SOX, S_SOX),
            "s_min_u32 s%d, s%d, s68" % (S_SOX, S_SOX)]

WSET = [[8, 12, 16, 20, 24, 28], [56, 60, 176, 180, 184, 188]]
def wread(role, f, sp, stage_odd, nxt, st=0):
    res = []
    for u in range(2):
        imm = sp * 6144 + u * 1536 + (WST if stage_odd else 0)
        if role == "gu":
            areg = V_WA + (1 if nxt else 0)
            imm += (f % 3) * 256 + (12288 if f >= 3 else 0)
        elif role == "v":
            areg = V_WA + (1 if nxt else 0)
            imm += f * 256
        else:
            areg = V_WA + (0 if f % 2 == 0 else 2) + (1 if nxt else 0)
            imm += (f // 2) * 256
        d = WSET[st][f] + u * 2
        res.append("ds_read_b64_tr_b16 v[%d:%d], v%d offset:%d" % (d, d + 1, areg, imm))
    return res

def accreg(f):
    return V_ACC + f * 16

def mfma(role, f, xf, st=0):
    acc = accreg(f); wf = WSET[st][f]
    if role == "v":
        return "v_mfma_f32_32x32x16_bf16 v[%d:%d], v[%d:%d], v[%d:%d], v[%d:%d]" % (acc, acc + 15, xf, xf + 3, wf, wf + 3, acc, acc + 15)
    return "v_mfma_f32_32x32x16_bf16 v[%d:%d], v[%d:%d], v[%d:%d], v[%d:%d]" % (acc, acc + 15, wf, wf + 3, xf, xf + 3, acc, acc + 15)

def unpack(src, t):
    return ["v_lshlrev_b32 v%d, 16, v%d" % (t, src), "v_and_b32 v%d, s%d, v%d" % (t + 1, S_MASK, src)]

def kstep(role, s, extra):
    NT = 6 if role == "gu" else 5
    xb = V_XF + (s & 1) * 4
    xn = V_XF + ((s + 1) & 1) * 4
    out = []
    sn = (s + 1) & 3
    loc = {0: (0, True, False), 1: (1, True, False), 2: (0, False, True), 3: (1, False, True)}[s]
    if 'nodma' in FL: extra = [e for e in extra if not any("lds" in x for x in e)]
    if 'nostg' in FL: extra = [e for e in extra if any("lds" in x or x.startswith("s_add") for x in e)]
    q = list(extra)
    def fl(l):
        o = []
        for x in l: o += x
        return o
    n = len(q)
    for f in range(NT):
        if f == 0: out.append("s_waitcnt lgkmcnt(%d)" % (2 * NT))
        out.append(mfma(role, f, xb, s & 1))
        if f == 0:
            out.append("ds_read_b128 v[%d:%d], v%d" % (xn, xn + 3, V_XA + sn))
            out.append("v_add_u32 v%d, s%d, v%d" % (V_XA + sn, S_XD, V_XA + sn))
        out += (wread(role, f, *loc, st=s & 1) if 'nord' not in FL else []) + fl(q[f * n // NT:(f + 1) * n // NT])
    if s == 3:
        for r in range(4 if role == "qk" else 2):
            out.append("v_xor_b32 v%d, 0xc000, v%d" % (V_WA + r, V_WA + r))
    return out

def stage_groups(src=None):
    G = []
    if src is None:
        G.append(["s_set_gpr_idx_on s%d, gpr_idx(SRC0)" % S_XI] + ["v_mov_b32 v%d, v%d" % (V_PK + k, V_XR + k) for k in range(8)] + ["s_set_gpr_idx_off"])
    else:
        G.append([])
    for g in range(2):
        A, B = V_SA + 2 * g, V_SA + 2 * g + 1
        for h in range(2):
            t = V_U + 4 * h
            r0 = (V_PK if src is None else src) + 4 * g + 2 * h
            u = ["v_lshlrev_b32 v%d, 16, v%d" % (t, r0), "v_and_b32 v%d, s%d, v%d" % (t + 1, S_MASK, r0),
                 "v_lshlrev_b32 v%d, 16, v%d" % (t + 2, r0 + 1), "v_and_b32 v%d, s%d, v%d" % (t + 3, S_MASK, r0 + 1)]
            G.append(u)
            G.append(["v_fma_f32 v%d, v%d, v%d, v%d" % (t + k, t + k, A, B) for k in range(4)])
            G.append(["v_cvt_pk_bf16_f32 v%d, v%d, v%d" % (V_PK + 4 * g + 2 * h + k, t + 2 * k, t + 2 * k + 1) for k in range(2)])
        G.append(["ds_write_b128 v%d, v[%d:%d]" % (V_XW + g, V_PK + 4 * g, V_PK + 4 * g + 3),
                  "v_add_u32 v%d, s%d, v%d" % (V_XW + g, S_XS, V_XW + g)])
    return G

def dgroups(gs):
    return [g[:-1] + ["s_nop 0", g[-1]] for g in gs]

def k1_main_loop(a, role):
    L = a.newlabel("K1LOOP")
    a.label(L)
    SG = stage_groups()
    dw = dgroups(dma_w())
    if 'bar1' not in FL:
        a("s_waitcnt vmcnt(3)")
        a("s_barrier")
        ex = [dma_w_adv() + dw[0]] + SG[0:2] + [dw[1]] + SG[2:4] + [dw[2]] + SG[4:6]
        for x in kstep(role, 0, ex): a(x)
        for x in kstep(role, 1, SG[6:11]): a(x)
        a("s_waitcnt vmcnt(3)")
        a("s_barrier")
        ex = [dma_w_adv() + dw[0]] + SG[11:13] + [dw[1]] + SG[13:15] + [dw[2]]
        for x in kstep(role, 2, ex): a(x)
    else:
        a("s_waitcnt vmcnt(0) lgkmcnt(0)")
        if 'nobar' not in FL: a("s_barrier")
        ex = [dma_w_adv() + dw[0], dw[1], dw[2], dma_w_adv() + dw[0]] + SG[0:1]
        for x in kstep(role, 0, ex): a(x)
        ex = [dw[1], dw[2]] + SG[1:5]
        for x in kstep(role, 1, ex): a(x)
        for x in kstep(role, 2, SG[5:11]): a(x)
    upd = ["s_add_u32 s69, s69, 1",
           "s_cmp_eq_u32 s69, 3",
           "s_cselect_b32 s69, 0, s69",
           "s_cmp_eq_u32 s69, 2",
           "s_cselect_b32 s%d, 0xffff8000, s%d" % (S_XD, S_T3),
           "s_cmp_eq_u32 s69, 0",
           "s_cselect_b32 s%d, 0xffff8000, s%d" % (S_XS, S_T3),
           "s_add_u32 s%d, s%d, 8" % (S_XI, S_XI),
           "s_min_u32 s%d, s%d, 72" % (S_XI, S_XI)]
    for x in upd[:5]: a(x)
    for x in kstep(role, 3, [] if 'bar1' not in FL else SG[11:15]): a(x)
    for x in upd[5:]: a(x)
    a("s_add_u32 s%d, s%d, 1" % (S_IT, S_IT))
    a("s_cmp_lt_u32 s%d, 10" % S_IT)
    a("s_cbranch_scc1 %s" % L)

def rne_bf16_hi(a, dst, src):
    a("v_cvt_pk_bf16_f32 v%d, v%d, v%d" % (dst, src, src))
    a("v_and_b32 v%d, 0xffff0000, v%d" % (dst, dst))

def halves_sum(a, r, t):
    a("v_mov_b32 v%d, v%d" % (t, r))
    a("s_nop 1")
    a("v_permlane32_swap_b32 v%d, v%d" % (t, r))
    a("s_nop 1")
    a("v_add_f32 v%d, v%d, v%d" % (r, r, t))

def k1(a):
    a("s_cmp_ge_u32 s2, 256")
    a("s_cbranch_scc1 K1_END")
    tstamp(a, 0)
    a("s_load_dwordx4 s[4:7], s[0:1], 0")
    a("s_load_dwordx2 s[8:9], s[0:1], 16")
    a("s_load_dwordx4 s[12:15], s[0:1], 40")
    a("s_load_dwordx2 s[10:11], s[0:1], 32")
    a("s_load_dwordx2 s[16:17], s[0:1], 72")
    a("v_lshrrev_b32 v1, 6, v0")
    a("s_and_b32 s%d, s2, 7" % S_T0)
    a("s_lshr_b32 s%d, s2, 3" % S_T1)
    a("v_readfirstlane_b32 s%d, v1" % S_W)
    a("s_and_b32 s%d, s%d, 1" % (S_M, S_T0))
    a("s_lshl_b32 s%d, s%d, 3" % (S_M, S_M))
    a("s_and_b32 s69, s%d, 7" % S_T1)
    a("s_add_u32 s%d, s%d, s69" % (S_M, S_M))
    a("s_lshr_b32 s%d, s%d, 1" % (S_N, S_T0))
    a("s_lshl_b32 s%d, s%d, 2" % (S_N, S_N))
    a("s_lshr_b32 s65, s%d, 3" % S_T1)
    a("s_add_u32 s%d, s%d, s65" % (S_N, S_N))
    a("v_and_b32 v0, 63, v0")
    a("v_lshrrev_b32 v8, 3, v0")
    a("s_lshl_b32 s%d, s%d, 4" % (S_T1, S_W))
    a("v_add_u32 v8, s%d, v8" % S_T1)
    a("v_and_b32 v10, 7, v0")
    a("v_mul_u32_u24 v11, 1280, v8")
    a("v_lshl_add_u32 v%d, v10, 4, v11" % V_DX)
    a("v_add_u32 v%d, %d, v%d" % (V_DX + 1, 8 * 1280, V_DX))
    a("s_mul_i32 s%d, s%d, %d" % (S_XROW, S_M, 128 * 1280))
    a("s_cmp_eq_u32 s%d, 15" % S_N)
    a("s_waitcnt lgkmcnt(0)")
    a("s_cbranch_scc1 K1_AUX")
    srd(a, SRD_X, S_X, 2048 * 1280)
    for c in range(10):
        for g in range(2):
            r = V_XR + c * 8 + g * 4
            a("buffer_load_dwordx4 v[%d:%d], v%d, s[%d:%d], s%d offen offset:%d" % (r, r + 3, V_DX + g, SRD_X, SRD_X + 3, S_XROW, c * 128))
    a("v_lshrrev_b32 v6, 4, v0")
    a("v_xor_b32 v11, v6, v10")
    a("v_lshlrev_b32 v8, 7, v8")
    a("v_add_u32 v8, %d, v8" % XB)
    a("v_lshl_add_u32 v%d, v11, 4, v8" % V_XW)
    a("v_xor_b32 v11, 4, v11")
    a("v_lshl_add_u32 v%d, v11, 4, v8" % (V_XW + 1))
    a("v_add_u32 v%d, 1024, v%d" % (V_XW + 1, V_XW + 1))
    a("s_lshr_b32 s%d, s%d, 2" % (S_WN, S_W))
    a("s_and_b32 s%d, s%d, 3" % (S_WM, S_W))
    a("s_mov_b32 s%d, 0xffff0000" % S_MASK)
    a("v_bfe_u32 v7, v0, 2, 2")
    a("v_and_b32 v9, 3, v0")
    a("v_lshlrev_b32 v9, 4, v9")
    a("s_and_b32 s%d, s%d, 1" % (S_T2, S_W))
    a("s_lshr_b32 s%d, s%d, 1" % (S_T3, S_W))
    a("s_mul_i32 s%d, s%d, 12288" % (S_LWB, S_T2))
    a("s_mul_i32 s%d, s%d, 3072" % (S_T1, S_T3))
    a("s_add_u32 s%d, s%d, s%d" % (S_LWB, S_LWB, S_T1))
    a("s_add_u32 s66, s%d, %d" % (S_LWB, 4 * WST))
    a("s_lshl_b32 s%d, s%d, 3" % (S_T1, S_T3))
    a("v_add_u32 v7, s%d, v7" % S_T1)
    a("s_mov_b32 s%d, s%d" % (S_LW, S_LWB))
    def issue(gs):
        for g in dgroups(gs):
            for x in g: a(x)
    a("s_cmp_lt_u32 s%d, 6" % S_N)
    a("s_cbranch_scc0 K1_SETGU")
    srd(a, SRD_A, S_WQKV, 640 * 3840)
    a("s_movk_i32 s%d, 3840" % S_T0)
    a("s_mul_i32 s%d, s%d, 640" % (S_COL, S_N))
    a("s_mul_i32 s%d, s%d, 320" % (S_T1, S_T2))
    a("s_add_u32 s%d, s%d, s%d" % (S_COL, S_COL, S_T1))
    a("s_mov_b32 s%d, 5" % S_T1)
    a("s_branch K1_SET2")
    a.label("K1_SETGU")
    a("s_cmp_eq_u32 s%d, 0" % S_T2)
    a("s_cselect_b32 s%d, s%d, s%d" % (SRD_A, S_WG, S_WU))
    a("s_cselect_b32 s%d, s%d, s%d" % (SRD_A + 1, S_WG + 1, S_WU + 1))
    a("s_mov_b32 s%d, 0x%x" % (SRD_A + 2, 640 * 3456))
    a("s_mov_b32 s%d, 0x00020000" % (SRD_A + 3))
    a("s_movk_i32 s%d, 3456" % S_T0)
    a("s_sub_u32 s%d, s%d, 6" % (S_COL, S_N))
    a("s_mul_i32 s%d, s%d, 384" % (S_COL, S_COL))
    a("s_mov_b32 s%d, 6" % S_T1)
    a.label("K1_SET2")
    a("s_lshl_b32 s%d, s%d, 5" % (S_STRIDE32, S_T0))
    a("s_mul_i32 s%d, s%d, 19" % (S_LAST, S_STRIDE32))
    a("s_add_u32 s%d, s%d, s%d" % (S_LAST, S_LAST, S_COL))
    a("s_mov_b32 s%d, s%d" % (S_SOA, S_COL))
    a("v_bfrev_b32 v10, 1")
    for p in range(3):
        d = V_DW + p
        a("v_add_u32 v8, %d, v6" % (4 * p))
        a("v_cmp_le_u32 vcc, 6, v8")
        a("s_nop 1")
        a("v_cndmask_b32 v11, 0, 1, vcc")
        a("v_mul_u32_u24 v12, 6, v11")
        a("v_sub_u32 v8, v8, v12")
        a("v_lshl_add_u32 v11, v11, 2, v7")
        a("v_mul_lo_u32 v11, v11, s%d" % S_T0)
        a("v_lshl_add_u32 v12, v8, 6, v9")
        a("v_add_u32 v11, v11, v12")
        a("v_cmp_gt_u32 vcc, s%d, v8" % S_T1)
        a("s_nop 1")
        a("v_cndmask_b32 v%d, v10, v11, vcc" % d)
    issue(dma_w())
    for x in dma_w_adv(): a(x)
    issue(dma_w())
    for x in dma_w_adv(): a(x)
    issue(dma_w())
    a("v_lshrrev_b32 v8, 5, v0")
    a("v_mul_u32_u24 v8, 3072, v8")
    a("v_bfe_u32 v9, v0, 2, 2")
    a("v_lshl_add_u32 v8, v9, 6, v8")
    a("v_bfe_u32 v9, v0, 4, 1")
    a("v_and_b32 v10, 3, v0")
    a("s_mul_i32 s%d, s%d, 12288" % (S_T0, S_WN))
    a("s_mul_i32 s%d, s%d, 768" % (S_T2, S_WN))
    a("s_cmp_lt_u32 s%d, 4" % S_N)
    a("s_cbranch_scc1 K1_AQK")
    a("v_lshl_add_u32 v11, v9, 5, v8")
    a("v_lshl_add_u32 v11, v10, 3, v11")
    a("s_cmp_lt_u32 s%d, 6" % S_N)
    a("s_cselect_b32 s%d, s%d, s%d" % (S_T0, S_T0, S_T2))
    a("v_add_u32 v%d, s%d, v11" % (V_WA, S_T0))
    a("s_branch K1_A2")
    a.label("K1_AQK")
    a("v_lshrrev_b32 v12, 1, v10")
    a("v_lshl_add_u32 v12, v9, 1, v12")
    a("v_lshl_add_u32 v12, v12, 3, v8")
    a("v_and_b32 v13, 1, v10")
    a("v_mul_u32_u24 v14, 544, v13")
    a("v_add3_u32 v%d, v12, v14, s%d" % (V_WA, S_T0))
    a("v_mul_u32_u24 v14, 736, v13")
    a("v_add_u32 v14, 32, v14")
    a("v_add3_u32 v%d, v12, v14, s%d" % (V_WA + 2, S_T0))
    a("v_xor_b32 v%d, 0xc000, v%d" % (V_WA + 3, V_WA + 2))
    a.label("K1_A2")
    a("v_xor_b32 v%d, 0xc000, v%d" % (V_WA + 1, V_WA))
    a("s_lshl_b32 s%d, s%d, 12" % (S_T0, S_WM))
    a("s_add_u32 s%d, s%d, %d" % (S_T0, S_T0, XB))
    a("v_and_b32 v8, 31, v0")
    a("v_lshlrev_b32 v8, 7, v8")
    a("v_add_u32 v8, s%d, v8" % S_T0)
    a("v_lshrrev_b32 v9, 5, v0")
    a("v_bfe_u32 v10, v0, 1, 3")
    for s_ in range(4):
        a("v_add_u32 v11, %d, v9" % (2 * s_))
        a("v_xor_b32 v11, v11, v10")
        a("v_lshl_add_u32 v%d, v11, 4, v8" % (V_XA + s_))
    for r in range(V_ACC, V_ACC + 96, 2):
        a("v_mov_b64 v[%d:%d], 0" % (r, r + 1))
    ST = V_WF
    for r in range(0, 8, 2):
        a("v_mov_b64 v[%d:%d], 0" % (ST + r, ST + r + 1))
    a("s_mov_b32 s%d, 0" % S_IT)
    a("s_mov_b32 s69, 0")
    a("s_mov_b32 s%d, 16384" % S_XS)
    a("s_mov_b32 s%d, 16384" % S_T3)
    a("s_mov_b32 s%d, 16384" % S_XD)
    a("s_mov_b32 s%d, 16" % S_XI)
    a("s_mov_b32 s%d, 0x3f803f80" % S_T0)
    tstamp(a, 1)
    for c in range(10):
        a("s_waitcnt vmcnt(%d)" % (9 + 2 * (9 - c)))
        for g in range(2):
            for r in range(4):
                x = V_XR + c * 8 + g * 4 + r
                a("v_dot2_f32_bf16 v%d, v%d, s%d, v%d" % (ST + g * 4 + (r & 1), x, S_T0, ST + g * 4 + (r & 1)))
                a("v_dot2_f32_bf16 v%d, v%d, v%d, v%d" % (ST + g * 4 + 2 + (r & 1), x, x, ST + g * 4 + 2 + (r & 1)))
    a("s_nop 2")
    for k in (0, 2, 4, 6):
        a("v_add_f32 v%d, v%d, v%d" % (ST + k, ST + k, ST + k + 1))
    for ctl in ("quad_perm:[1,0,3,2]", "quad_perm:[2,3,0,1]", "row_half_mirror"):
        a("s_nop 1")
        for k in (0, 2, 4, 6):
            a("v_add_f32_dpp v%d, v%d, v%d %s row_mask:0xf bank_mask:0xf" % (ST + k, ST + k, ST + k, ctl))
    for g in range(2):
        m, q = ST + 4 * g, ST + 4 * g + 2
        a("v_mul_f32 v%d, 0x%x, v%d" % (m, f2u(1.0 / 640), m))
        a("v_mul_f32 v%d, 0x%x, v%d" % (q, f2u(1.0 / 640), q))
        a("v_fma_f32 v%d, -v%d, v%d, v%d" % (q, m, m, q))
        a("v_max_f32 v%d, 0, v%d" % (q, q))
        rne_bf16_hi(a, q, q)
        a("v_add_f32 v%d, 0x%x, v%d" % (q, f2u(1e-5), q))
        rne_bf16_hi(a, q, q)
        a("v_sqrt_f32 v%d, v%d" % (q, q))
        rne_bf16_hi(a, m, m)
        rne_bf16_hi(a, q, q)
        a("v_rcp_f32 v%d, v%d" % (V_SA + 2 * g, q))
        a("s_nop 0")
        a("v_mul_f32 v%d, v%d, v%d" % (V_SA + 2 * g + 1, m, V_SA + 2 * g))
        a("v_sub_f32 v%d, 0, v%d" % (V_SA + 2 * g + 1, V_SA + 2 * g + 1))
    for c in range(2):
        for grp in stage_groups(V_XR + c * 8):
            for x in grp: a(x)
    a("s_mov_b32 s%d, 0xffff8000" % S_XS)
    tstamp(a, 2)
    a("s_waitcnt vmcnt(6) lgkmcnt(0)")
    a("s_barrier")
    a("s_cmp_lt_u32 s%d, 4" % S_N)
    a("s_cbranch_scc1 K1_QK")
    a("s_cmp_lt_u32 s%d, 6" % S_N)
    a("s_cbranch_scc1 K1_V")
    for role in ("gu", "qk", "v"):
        a.label("K1_" + role.upper())
        NT = 6 if role == "gu" else 5
        a("ds_read_b128 v[%d:%d], v%d" % (V_XF, V_XF + 3, V_XA))
        a("v_add_u32 v%d, s%d, v%d" % (V_XA, S_XD, V_XA))
        for sp in range(2):
            for f in range(NT):
                for x in wread(role, f, sp, False, False, st=sp): a(x)
        k1_main_loop(a, role)
        tstamp(a, 3)
        a("s_lshl_b32 s%d, s%d, 2" % (S_TILE, S_M))
        a("s_add_u32 s%d, s%d, s%d" % (S_TILE, S_TILE, S_WM))
        a("v_lshlrev_b32 v%d, 4, v0" % V_T2)
        a("s_waitcnt lgkmcnt(0)")
        tstamp(a, 4)
        {"gu": ep_gu, "qk": ep_qk, "v": ep_v}[role](a)
        a("s_branch K1_FIN")
    k1_aux(a)
    a.label("K1_FIN")
    tsdump(a, 5, [0, 4, 254, 2], S_W)
    a.label("K1_END")
    a("s_endpgm")

def ep_gu(a):
    srd_off(a, SRD_O, S_WS, HF_OFF, HF_SZ)
    a("s_sub_u32 s%d, s%d, 6" % (S_T0, S_N))
    a("s_mul_i32 s%d, s%d, 6" % (S_T0, S_T0))
    a("s_mul_i32 s%d, s%d, 3" % (S_T1, S_WN))
    a("s_add_u32 s%d, s%d, s%d" % (S_T0, S_T0, S_T1))
    a("s_lshl_b32 s%d, s%d, 11" % (S_T0, S_T0))
    a("s_mul_i32 s%d, s%d, %d" % (S_T1, S_TILE, 108 * 1024))
    a("s_add_u32 s%d, s%d, s%d" % (S_T1, S_T1, S_T0))
    a("s_nop 4")
    for j in range(3):
        g = accreg(j); u = accreg(3 + j)
        o = V_WF + j * 8
        for r in range(0, 16, 2):
            a("v_pk_mul_f32 v[%d:%d], v[%d:%d], v[%d:%d]" % (g + r, g + r + 1, g + r, g + r + 1, u + r, u + r + 1))
        for r in range(0, 16, 2):
            a("v_cvt_pk_bf16_f32 v%d, v%d, v%d" % (o + r // 2, g + r, g + r + 1))
        for t in range(2):
            a("buffer_store_dwordx4 v[%d:%d], v%d, s[%d:%d], s%d offen offset:%d" % (o + 4 * t, o + 4 * t + 3, V_T2, SRD_O, SRD_O + 3, S_T1, t * 1024))
        a("s_add_u32 s%d, s%d, 2048" % (S_T1, S_T1))

def ep_qk(a):
    a("s_and_b32 s%d, s%d, 1" % (S_T0, S_N))
    a("s_lshl_b32 s%d, s%d, 4" % (S_T0, S_T0))
    a("s_lshl_b32 s%d, s%d, 3" % (S_T1, S_WN))
    a("s_add_u32 s%d, s%d, s%d" % (S_T0, S_T0, S_T1))
    a("v_lshrrev_b32 v8, 5, v0")
    a("v_and_b32 v9, 31, v0")
    a("s_lshl_b32 s%d, s%d, 6" % (S_T1, S_T0))
    a("s_add_u32 s%d, s%d, s%d" % (S_T1, S_T1, S_TILE))
    a("s_cmp_lt_u32 s%d, 2" % S_N)
    a("s_cbranch_scc0 K1_EPK")
    srd_off(a, SRD_O, S_WS, QF_OFF, QF_SZ)
    a("v_mov_b32 v%d, 0x%x" % (V_T0, f2u(QSCALE)))
    a("s_mov_b32 s%d, %d" % (S_T2, 4 * 64 * 1536))
    a("v_mul_lo_u32 v10, v8, s%d" % S_T2)
    a("v_lshl_add_u32 v10, v9, 4, v10")
    a("s_mul_i32 s%d, s%d, 1536" % (S_T1, S_T1))
    def common(hh, scale=True):
        b = V_ACC + hh * 20
        o = 12 + (hh % 2) * 12
        if scale:
            for r in range(0, 20, 2):
                a("v_pk_mul_f32 v[%d:%d], v[%d:%d], v[%d:%d] op_sel_hi:[1,0]" % (b + r, b + r + 1, b + r, b + r + 1, V_T0, V_T0 + 1))
        for r in range(10):
            a("v_cvt_pk_bf16_f32 v%d, v%d, v%d" % (o + r, b + 2 * r, b + 2 * r + 1))
        a("v_mul_f32 v%d, v%d, v%d" % (o + 10, b, b))
        for r in range(1, 20):
            a("v_fmac_f32 v%d, v%d, v%d" % (o + 10, b + r, b + r))
        return o
    for hh in range(4):
        o = common(hh)
        a("v_mov_b32 v%d, 0" % (o + 11))
        a("v_sqrt_f32 v%d, v%d" % (o + 10, o + 10))
        a("buffer_store_dwordx4 v[%d:%d], v10, s[%d:%d], s%d offen" % (o, o + 3, SRD_O, SRD_O + 3, S_T1))
        a("buffer_store_dwordx4 v[%d:%d], v10, s[%d:%d], s%d offen offset:512" % (o + 4, o + 7, SRD_O, SRD_O + 3, S_T1))
        a("buffer_store_dwordx4 v[%d:%d], v10, s[%d:%d], s%d offen offset:1024" % (o + 8, o + 11, SRD_O, SRD_O + 3, S_T1))
        a("s_add_u32 s%d, s%d, %d" % (S_T1, S_T1, 64 * 1536))
    a("s_branch K1_FIN")
    a.label("K1_EPK")
    srd_off(a, SRD_O, S_WS, KV_OFF, KV_SZ)
    srd_off(a, SRD_O2, S_WS, KNT_OFF, KNT_SZ)
    a("s_mov_b32 s%d, %d" % (S_T2, 4 * 64 * KVT))
    a("v_mul_lo_u32 v10, v8, s%d" % S_T2)
    a("v_lshl_add_u32 v11, v9, 3, v10")
    a("v_lshl_add_u32 v10, v9, 4, v10")
    a("v_lshlrev_b32 v36, 10, v8")
    a("s_lshl_b32 s%d, s%d, 2" % (S_T3, S_T1))
    a("s_mul_i32 s%d, s%d, %d" % (S_T1, S_T1, KVT))
    for hh in range(4):
        o = common(hh, False)
        a("buffer_store_dwordx4 v[%d:%d], v10, s[%d:%d], s%d offen" % (o, o + 3, SRD_O, SRD_O + 3, S_T1))
        a("buffer_store_dwordx4 v[%d:%d], v10, s[%d:%d], s%d offen offset:512" % (o + 4, o + 7, SRD_O, SRD_O + 3, S_T1))
        a("buffer_store_dwordx2 v[%d:%d], v11, s[%d:%d], s%d offen offset:1024" % (o + 8, o + 9, SRD_O, SRD_O + 3, S_T1))
        m = o + 10
        for sh in (1, 2, 4, 8):
            a("s_nop 1")
            a("v_max_f32_dpp v%d, v%d, v%d row_ror:%d row_mask:0xf bank_mask:0xf" % (m, m, m, sh))
        a("v_mov_b32 v%d, v%d" % (o + 11, m))
        a("s_nop 1")
        a("v_permlane16_swap_b32 v%d, v%d" % (o + 11, m))
        a("s_nop 1")
        a("v_max_f32 v%d, v%d, v%d" % (m, m, o + 11))
        a("buffer_store_dword v%d, v36, s[%d:%d], s%d offen" % (m, SRD_O2, SRD_O2 + 3, S_T3))
        a("s_add_u32 s%d, s%d, %d" % (S_T1, S_T1, 64 * KVT))
        a("s_add_u32 s%d, s%d, 256" % (S_T3, S_T3))

def ep_v(a):
    srd_off(a, SRD_O, S_WS, KV_OFF, KV_SZ)
    a("v_lshrrev_b32 v8, 5, v0")
    a("s_and_b32 s%d, s%d, 1" % (S_T0, S_N))
    a("s_mul_i32 s%d, s%d, 320" % (S_T0, S_T0))
    a("s_mul_i32 s%d, s%d, 160" % (S_T1, S_WN))
    a("s_add_u32 s%d, s%d, s%d" % (S_T0, S_T0, S_T1))
    a("v_and_b32 v11, 31, v0")
    a("v_add_u32 v11, s%d, v11" % S_T0)
    a("v_mul_u32_u24 v8, 336, v8")
    a("s_movk_i32 s%d, 3277" % S_T2)
    a("s_mov_b32 s%d, %d" % (S_T3, 64 * KVT - 320))
    for T in range(5):
        a("v_add_u32 v50, %d, v11" % (32 * T))
        a("v_mul_lo_u32 v51, v50, s%d" % S_T2)
        a("v_lshrrev_b32 v51, 16, v51")
        a("v_mul_lo_u32 v51, v51, s%d" % S_T3)
        a("v_lshl_add_u32 v51, v50, 4, v51")
        a("v_add_u32 v%d, v51, v8" % (44 + T))
    a("s_mul_i32 s%d, s%d, 3277" % (S_T2, S_T0))
    a("s_lshr_b32 s%d, s%d, 16" % (S_T2, S_T2))
    a("v_lshrrev_b32 v52, 2, v0")
    a("v_add_u32 v52, s%d, v52" % S_T2)
    a("s_mov_b32 s%d, %d" % (S_T3, 64 * KVT))
    a("v_mul_lo_u32 v52, v52, s%d" % S_T3)
    a("v_and_b32 v53, 3, v0")
    a("v_mul_u32_u24 v53, 336, v53")
    a("v_add3_u32 v52, v52, v53, 32")
    a("v_add_u32 v52, 288, v52")
    a("v_bfrev_b32 v53, 1")
    a("v_cmp_gt_u32 vcc, 32, v0")
    for r in range(4):
        a("v_mov_b32 v%d, 0x3f803f80" % (56 + r))
    a("v_cndmask_b32 v52, v53, v52, vcc")
    a("s_mul_i32 s%d, s%d, %d" % (S_T1, S_TILE, KVT))
    a("s_add_u32 s%d, s%d, 1280" % (S_T1, S_T1))
    a("buffer_store_dwordx4 v[56:59], v52, s[%d:%d], s%d offen" % (SRD_O, SRD_O + 3, S_T1))
    for T in range(5):
        b = V_ACC + T * 16
        for r in range(8):
            a("v_cvt_pk_bf16_f32 v%d, v%d, v%d" % (b + r, b + 2 * r, b + 2 * r + 1))
        for t in range(2):
            a("buffer_store_dwordx4 v[%d:%d], v%d, s[%d:%d], s%d offen offset:%d" % (b + 4 * t, b + 4 * t + 3, 44 + T, SRD_O, SRD_O + 3, S_T1, t * 672))

def k1_aux(a):
    a.label("K1_AUX")
    tr_d = 20;
    srd(a, SRD_A, S_WD, 1728 * 1280)
    srd(a, SRD_B, S_WO, 640 * 1280)
    srd_off(a, SRD_O, S_WS, WDF_OFF, WDF_SZ)
    srd_off(a, SRD_O2, S_WS, WOF_OFF, WOF_SZ)
    a("s_lshl_b32 s%d, s%d, 3" % (S_T0, S_M))
    a("s_add_u32 s%d, s%d, s%d" % (S_IT, S_T0, S_W))
    a("v_bfe_u32 v8, v0, 2, 2")
    a("v_mul_u32_u24 v8, 1280, v8")
    a("v_lshrrev_b32 v9, 4, v0")
    a("v_lshl_add_u32 v8, v9, 6, v8")
    a("v_and_b32 v9, 3, v0")
    a("v_lshl_add_u32 v1, v9, 4, v8")
    a("v_bfe_u32 v8, v0, 2, 2")
    a("v_lshlrev_b32 v8, 6, v8")
    a("v_bfe_u32 v9, v0, 4, 1")
    a("v_lshl_add_u32 v8, v9, 5, v8")
    a("v_and_b32 v9, 3, v0")
    a("v_lshl_add_u32 v8, v9, 3, v8")
    a("s_lshl_b32 s%d, s%d, 13" % (S_LW, S_W))
    a("v_add_u32 v8, s%d, v8" % S_LW)
    a("v_lshrrev_b32 v9, 5, v0")
    a("v_lshl_add_u32 v2, v9, 10, v8")
    a("v_lshl_add_u32 v3, v9, 11, v8")
    a("v_lshlrev_b32 v4, 4, v0")
    L = "K1_AUXLOOP"
    a.label(L)
    a("s_cmp_ge_u32 s%d, 370" % S_IT)
    a("s_cbranch_scc1 K1_FIN")
    a("s_cmp_ge_u32 s%d, 270" % S_IT)
    a("s_cbranch_scc1 K1_AUXWO")
    for kind in ("wd", "wo"):
        if kind == "wo":
            a.label("K1_AUXWO")
            a("s_sub_u32 s%d, s%d, 270" % (S_T0, S_IT))
        else:
            a("s_mov_b32 s%d, s%d" % (S_T0, S_IT))
        a("s_mul_i32 s%d, s%d, 13108" % (S_T1, S_T0))
        a("s_lshr_b32 s%d, s%d, 16" % (S_T1, S_T1))
        a("s_mul_i32 s%d, s%d, 5" % (S_T2, S_T1))
        a("s_sub_u32 s%d, s%d, s%d" % (S_T2, S_T0, S_T2))
        a("s_mul_i32 s%d, s%d, %d" % (S_SOA, S_T1, 32 * 1280))
        a("s_lshl_b32 s%d, s%d, 8" % (S_T3, S_T2))
        a("s_add_u32 s%d, s%d, s%d" % (S_SOA, S_SOA, S_T3))
        sr_ = SRD_A if kind == "wd" else SRD_B
        for k4 in range(8):
            a("s_add_u32 m0, s%d, %d" % (S_LW, k4 * 1024))
            a("s_nop 0")
            a("buffer_load_dwordx4 v1, s[%d:%d], s%d offen lds" % (sr_, sr_ + 3, S_SOA))
            a("s_add_u32 s%d, s%d, %d" % (S_SOA, S_SOA, 4 * 1280))
        NS = 108 if kind == "wd" else 40
        so = SRD_O if kind == "wd" else SRD_O2
        a("s_mul_i32 s%d, s%d, %d" % (S_SOB, S_T2, 4 * NS * 1024))
        a("s_lshl_b32 s%d, s%d, 11" % (S_T3, S_T1))
        a("s_add_u32 s%d, s%d, s%d" % (S_SOB, S_SOB, S_T3))
        a("s_waitcnt vmcnt(0)")
        ar = 2 if kind == "wd" else 3
        for T in range(4):
            for t in range(2):
                d = 16 + (T * 2 + t) * 4
                for u in range(2):
                    k4c = (4 * t + 2 * u) if kind == "wd" else (4 * t + u)
                    a("ds_read_b64_tr_b16 v[%d:%d], v%d offset:%d" % (d + 2 * u, d + 2 * u + 1, ar, k4c * 1024 + T * 256))
        a("s_waitcnt lgkmcnt(0)")
        for T in range(4):
            for t in range(2):
                d = 16 + (T * 2 + t) * 4
                a("buffer_store_dwordx4 v[%d:%d], v4, s[%d:%d], s%d offen offset:%d" % (d, d + 3, so, so + 3, S_SOB, t * 1024))
            a("s_add_u32 s%d, s%d, %d" % (S_SOB, S_SOB, NS * 1024))
        a("s_add_u32 s%d, s%d, 128" % (S_IT, S_IT))
        a("s_waitcnt vmcnt(0)")
        a("s_branch %s" % L)
```

```python
from dsl import *
import os
from k1 import (KVT, QF_OFF, QF_SZ, KV_OFF, KV_SZ, KNT_OFF, KNT_SZ, HF_OFF, HF_SZ, WDF_OFF, WDF_SZ, OF_OFF, OF_SZ, BP_OFF, BP_SZ, f2u, tstamp, tsdump, FL)

AO = 216
NV = 216 + 176
K2F = os.environ.get('K2F', '').split(',')
PSTR = 656
LDS_D = 0
LDS_O = 4 * 32 * PSTR
LDS_F = LDS_O + 4 * 6144
K2_LDS = LDS_F

S_WS = 4
SRD_Q, SRD_KV, SRD_O, SRD_N = 8, 12, 16, 20
S_W, S_HEAD, S_QB, S_T0, S_T1, S_T2, S_T3 = 24, 25, 26, 27, 28, 29, 30
S_KV, S_KVL, S_IT = 31, 32, 33
S_VM = 34
S_QH, S_KK = 36, 37
S_TT, S_CG = 38, 39
S_X = 40

V_O, V_Q, V_S, V_P, V_KV = 16, 80, 112, 144, 152
V_AK0, V_AK1, V_AV = 1, 2, 3

def kvload(b):
    k = V_KV + b * 16
    return ["buffer_load_dwordx4 v[%d:%d], v%d, s[%d:%d], s%d offen" % (k, k + 3, V_AK0, SRD_KV, SRD_KV + 3, S_KV),
            "buffer_load_dwordx2 v[%d:%d], v%d, s[%d:%d], s%d offen" % (k + 4, k + 5, V_AK1, SRD_KV, SRD_KV + 3, S_KV),
            "buffer_load_dwordx4 v[%d:%d], v%d, s[%d:%d], s%d offen" % (k + 8, k + 11, V_AV, SRD_KV, SRD_KV + 3, S_KV),
            "buffer_load_dwordx4 v[%d:%d], v%d, s[%d:%d], s%d offen offset:672" % (k + 12, k + 15, V_AV, SRD_KV, SRD_KV + 3, S_KV),
            "s_add_u32 s%d, s%d, %d" % (S_KV, S_KV, KVT),
            "s_min_u32 s%d, s%d, s%d" % (S_KV, S_KV, S_KVL)]

def mf(d, a_, b_, c):
    cs = "0" if c is None else "v[%d:%d]" % (c, c + 15)
    return "v_mfma_f32_32x32x16_bf16 v[%d:%d], v[%d:%d], v[%d:%d], %s" % (d, d + 15, a_, a_ + 3, b_, b_ + 3, cs)

def s_mfma(n, part):
    n &= 15
    b, i = n >> 2, n & 3
    s = V_S + (n & 1) * 16
    k = V_KV + b * 16 + part * 4
    q = V_Q + i * 8 + part * 4
    return mf(s, k, q, None if part == 0 else s)

def pv_mfma(n, part):
    n &= 15
    b, i = n >> 2, n & 3
    v = V_KV + b * 16 + 8 + part * 4
    o = V_O + i * 16
    return mf(o, v, V_P + part * 4, o)

def attn_step_old(a, n):
    s = V_S + (n & 1) * 16
    E = lambda r: a("v_exp_f32 v%d, v%d" % (s + r, s + r))
    C = lambda r: a("v_cvt_pk_bf16_f32 v%d, v%d, v%d" % (V_P + r, s + 2 * r, s + 2 * r + 1))
    if (n & 3) == 3:
        a("s_waitcnt vmcnt(8)")
    a(s_mfma(n + 1, 0))
    for r in range(0, 4): E(r)
    a(pv_mfma(n - 1, 1))
    if (n & 3) == 0:
        for x in kvload(((n >> 2) - 1) & 3): a(x)
    for r in range(4, 8): E(r)
    a(s_mfma(n + 1, 1))
    for r in range(0, 4): C(r)
    for r in range(8, 12): E(r)
    a(pv_mfma(n, 0))
    for r in range(12, 16): E(r)
    for r in range(4, 8): C(r)

def wave_max(a, r, t):
    for sh in (1, 2, 4, 8):
        a("s_nop 1")
        a("v_max_f32_dpp v%d, v%d, v%d row_ror:%d row_mask:0xf bank_mask:0xf" % (r, r, r, sh))
    for ins in ("v_permlane16_swap_b32", "v_permlane32_swap_b32"):
        a("v_mov_b32 v%d, v%d" % (t, r))
        a("s_nop 1")
        a("%s v%d, v%d" % (ins, t, r))
        a("s_nop 1")
        a("v_max_f32 v%d, v%d, v%d" % (r, r, t))


SRD_H, SRD_W, SRD_H2, SRD_W2 = 44, 48, 52, 64
S_DH, S_DHL, S_DW, S_DWL = 56, 57, 58, 59
DBUF = 80
def amf(T, b):
    r = DBUF + b * 24
    return "v_mfma_f32_32x32x16_bf16 a[%d:%d], a[%d:%d], a[%d:%d], a[%d:%d]" % (T * 16, T * 16 + 15, r + 4 + 4 * T, r + 7 + 4 * T, r, r + 3, T * 16, T * 16 + 15)

def dload(b, g=None, srd2=False):
    r = DBUF + b * 24
    sh, sw = (SRD_H2, SRD_W2) if srd2 else (SRD_H, SRD_W)
    L = ["buffer_load_dwordx4 a[%d:%d], v%d, s[%d:%d], s%d offen offset:%d" % (r, r + 3, V_AK0, sh, sh + 3, S_DH, g * 1024)]
    for T in range(5):
        L.append("buffer_load_dwordx4 a[%d:%d], v%d, s[%d:%d], s%d offen offset:%d" % (r + 4 + 4 * T, r + 7 + 4 * T, 10 + T, sw, sw + 3, S_DW, g * 1024))
    return L

def attn_step(a, n, withd, extra=None):
    s = V_S + (n & 1) * 16
    E = lambda r: "v_exp_f32 v%d, v%d" % (s + r, s + r)
    C = lambda r: "v_cvt_pk_bf16_f32 v%d, v%d, v%d" % (V_P + r, s + 2 * r, s + 2 * r + 1)
    g, j = n >> 2, n & 3
    M1, M2, M3, M4 = s_mfma(n + 1, 0), pv_mfma(n - 1, 1), s_mfma(n + 1, 1), pv_mfma(n, 0)
    F = []
    if j == 0: F += kvload((g - 1) & 3)[:5]
    if withd:
        dl = dload((g - 1) & 3, (g + 3) & 3, srd2=(g == 0))
        if j > 0: F += dl[2 * (j - 1):2 * j]
        if g == 0 and j == 3: F += ["s_add_u32 s%d, s%d, 4096" % (S_DH, S_DH), "s_add_u32 s%d, s%d, 4096" % (S_DW, S_DW)]
    if extra: F += extra
    if j == 3: a("s_waitcnt vmcnt(%d)" % (24 if withd else (14 if g < 2 else 8)))
    if not withd:
        seq = [M1, "f", E(0), E(1), E(2), E(3), M2, "f", E(4), E(5), E(6), E(7), M3, "f", C(0), C(1), C(2), C(3), E(8), E(9), E(10), E(11), M4, "f", "f",
               E(12), E(13), E(14), E(15), C(4), C(5), C(6), C(7)]
    elif j < 3:
        D = amf(j, g)
        seq = [M1, "k", E(0), E(1), E(2), E(3), M2, "f", E(4), E(5), E(6), E(7), M3, "f", C(0), C(1), C(2), C(3), E(8), E(9), M4, "f",
               E(10), E(11), E(12), E(13), "p", D, "f", E(14), E(15), C(4), C(5), C(6), C(7)]
    else:
        D1, D2 = amf(3, g), amf(4, g)
        seq = [M1, E(0), E(1), E(2), M2, "f", E(3), E(4), E(5), D1, "f", E(6), E(7), C(0), C(1), M3, "f", C(2), C(3), E(8), E(9), M4, "f",
               E(10), E(11), E(12), D2, E(13), E(14), E(15), C(4), C(5), C(6), C(7)]
    if j == 0:
        K0, K1, V0, V1, SA = F[:5]; rest = F[5:]
        F = [K0, V0, V1, K1, SA] + rest if False else F
    for x in seq:
        if x == "k":
            if j == 0 and F: a(F.pop(0))
        elif x == "f":
            if F: a(F.pop(0))
        elif x == "p":
            if j == 0: a("s_waitcnt vmcnt(24)")
        else: a(x)
    for y in F: a(y)

def k2(a):
    a("s_cmp_ge_u32 s2, 256")
    a("s_cbranch_scc1 K2_END")
    tstamp(a, 0)
    a("s_load_dwordx2 s[4:5], s[0:1], 72")
    a("v_lshrrev_b32 v1, 6, v0")
    a("s_and_b32 s%d, s2, 7" % S_T0)
    a("s_lshr_b32 s%d, s2, 3" % S_T1)
    a("v_readfirstlane_b32 s%d, v1" % S_W)
    a("s_lshr_b32 s%d, s%d, 3" % (S_CG, S_T1))
    a("s_lshl_b32 s%d, s%d, 2" % (S_HEAD, S_T0))
    a("s_add_u32 s%d, s%d, s%d" % (S_HEAD, S_HEAD, S_CG))
    a("s_and_b32 s%d, s%d, 7" % (S_QB, S_T1))
    a("s_lshl_b32 s%d, s%d, 3" % (S_TT, S_T0))
    a("s_add_u32 s%d, s%d, s%d" % (S_TT, S_TT, S_QB))
    a("v_mov_b32 v15, v0")
    a("v_and_b32 v0, 63, v0")
    a("v_lshlrev_b32 v%d, 4, v0" % V_AK0)
    a("s_and_b32 s%d, s%d, 1" % (S_QH, S_W))
    a("s_lshr_b32 s%d, s%d, 1" % (S_KK, S_W))
    a("v_and_b32 v4, 31, v0")
    a("v_lshrrev_b32 v5, 5, v0")
    a("v_lshlrev_b32 v%d, 3, v4" % V_AK1)
    a("v_add_u32 v%d, 1024, v%d" % (V_AK1, V_AK1))
    a("v_mul_u32_u24 v%d, 336, v5" % V_AV)
    a("v_min_u32 v7, 20, v4")
    a("v_lshl_add_u32 v%d, v7, 4, v%d" % (V_AV, V_AV))
    a("v_add_u32 v%d, 1280, v%d" % (V_AV, V_AV))
    a("s_lshl_b32 s%d, s%d, 6" % (S_T0, S_HEAD))
    a("s_lshl_b32 s%d, s%d, 5" % (S_T1, S_KK))
    a("s_add_u32 s%d, s%d, s%d" % (S_T1, S_T1, S_T0))
    a("s_mul_i32 s%d, s%d, %d" % (S_KV, S_T1, KVT))
    a("s_add_u32 s%d, s%d, %d" % (S_KVL, S_KV, 31 * KVT))
    a("s_mul_i32 s%d, s%d, %d" % (S_X, S_T0, KVT))
    a("s_lshl_b32 s%d, s%d, 3" % (S_T1, S_QB))
    a("s_lshl_b32 s%d, s%d, 2" % (S_T2, S_QH))
    a("s_add_u32 s%d, s%d, s%d" % (S_T1, S_T1, S_T2))
    a("s_add_u32 s%d, s%d, s%d" % (S_T1, S_T1, S_T0))
    a("s_mul_i32 s%d, s%d, 1536" % (S_T1, S_T1))
    a("v_lshlrev_b32 v6, 4, v4")
    a("s_lshl_b32 s%d, s%d, 8" % (S_T2, S_HEAD))
    a("v_lshlrev_b32 v7, 2, v0")
    a("s_waitcnt lgkmcnt(0)")
    srd_off(a, SRD_N, S_WS, KNT_OFF, KNT_SZ)
    srd_off(a, SRD_Q, S_WS, QF_OFF, QF_SZ)
    a("buffer_load_dword v8, v7, s[%d:%d], s%d offen" % (SRD_N, SRD_N + 3, S_T2))
    for i in range(4):
        q = V_Q + i * 8
        a("buffer_load_dwordx4 v[%d:%d], v%d, s[%d:%d], s%d offen" % (q, q + 3, V_AK0, SRD_Q, SRD_Q + 3, S_T1))
        a("buffer_load_dwordx4 v[%d:%d], v6, s[%d:%d], s%d offen offset:1024" % (q + 4, q + 7, SRD_Q, SRD_Q + 3, S_T1))
        a("s_add_u32 s%d, s%d, 1536" % (S_T1, S_T1))
    srd_off(a, SRD_KV, S_WS, KV_OFF, KV_SZ + 4 * KVT)
    for b in range(4):
        k = V_KV + b * 16
        a("v_mov_b32 v%d, 0x3f803f80" % (k + 6))
        a("v_mov_b32 v%d, 0x3f80" % (k + 7))
        if b == 3:
            for r in range(12, 16, 2):
                a("v_mov_b64 v[%d:%d], 0" % (k + r, k + r + 1))
    for x in kvload(0): a(x)
    srd_off(a, SRD_H, S_WS, HF_OFF, HF_SZ + 8192)
    srd_off(a, SRD_H2, S_WS, HF_OFF, HF_SZ)
    srd_off(a, SRD_W, S_WS, WDF_OFF, WDF_SZ + 8192)
    srd_off(a, SRD_W2, S_WS, WDF_OFF, WDF_SZ)
    a("s_mul_i32 s%d, s%d, 27" % (S_T0, S_W))
    a("s_mul_i32 s%d, s%d, 108" % (S_T1, S_TT))
    a("s_add_u32 s%d, s%d, s%d" % (S_T1, S_T1, S_T0))
    a("s_lshl_b32 s%d, s%d, 10" % (S_DH, S_T1))
    a("s_mul_i32 s%d, s%d, 540" % (S_T1, S_CG))
    a("s_add_u32 s%d, s%d, s%d" % (S_T1, S_T1, S_T0))
    a("s_lshl_b32 s%d, s%d, 10" % (S_DW, S_T1))
    for T in range(5):
        a("v_add_u32 v%d, 0x%x, v%d" % (10 + T, T * 108 * 1024, V_AK0))
    for b in range(3):
        if b > 0:
            for x in kvload(b): a(x)
        for x in dload(b, b): a(x)
    for r in range(0, 64, 2):
        a("v_mov_b64 v[%d:%d], 0" % (V_O + r, V_O + r + 1))
    for r in range(0, 8, 2):
        a("v_mov_b64 v[%d:%d], 0" % (V_P + r, V_P + r + 1))
    for r in range(80):
        a("v_accvgpr_write_b32 a%d, 0" % r)
    a("s_waitcnt vmcnt(30)")
    tstamp(a, 1)
    wave_max(a, 8, 9)
    a("v_sqrt_f32 v8, v8")
    a("s_nop 0")
    a("v_mul_f32 v8, 0x%x, v8" % f2u(1.03))
    a("s_mov_b64 s[60:61], 0")
    a("v_mov_b32 v7, 0x%x" % f2u(50.0))
    for i in range(4):
        q = V_Q + i * 8
        a("v_mul_f32 v9, v8, v%d" % (q + 6))
        a("v_cmp_nle_f32 vcc, v9, v7")
        a("v_sub_f32 v9, 0, v9")
        a("s_or_b64 s[60:61], s[60:61], vcc")
        a("v_cvt_pk_bf16_f32 v%d, v9, 0" % (q + 6))
        a("v_mov_b32 v%d, 0" % (q + 7))
    a("s_cmp_lg_u64 s[60:61], 0")
    a("s_cbranch_scc1 K2_SLOW")
    a.label("K2_RUN")
    a("v_cmp_gt_u32 vcc, 32, v0")
    a("s_nop 1")
    for i in range(4):
        q = V_Q + i * 8
        for r in range(4, 8):
            a("v_cndmask_b32 v%d, 0, v%d, vcc" % (q + r, q + r))
    a("s_waitcnt vmcnt(26)")
    a("s_nop 0")
    a(s_mfma(0, 0))
    a(s_mfma(0, 1))
    a("s_mov_b32 s%d, 0" % S_IT)
    a("s_nop 7")
    a("s_nop 3")
    a.label("K2_LOOP")
    a("s_cmp_eq_u32 s%d, 6" % S_IT)
    a("s_cselect_b32 s%d, 0, s%d" % (SRD_H2 + 2, SRD_H + 2))
    a("s_cselect_b32 s%d, 0, s%d" % (SRD_W2 + 2, SRD_W + 2))
    for n in range(16):
        attn_step(a, n, True)
    a("s_add_u32 s%d, s%d, 1" % (S_IT, S_IT))
    a("s_cmp_lt_u32 s%d, 7" % S_IT)
    a("s_cbranch_scc1 K2_LOOP")
    a("v_and_b32 v4, 31, v0")
    a("v_lshrrev_b32 v5, 5, v0")
    a("v_mul_u32_u24 v4, %d, v4" % PSTR)
    a("v_lshl_add_u32 v4, v5, 4, v4")
    a("s_mul_i32 s%d, s%d, %d" % (S_T0, S_W, 32 * PSTR))
    a("v_add_u32 v4, s%d, v4" % S_T0)
    wr = []
    for T in range(5):
        for g in range(4):
            r = T * 16 + g * 4
            wr.append("ds_write_b128 v4, a[%d:%d] offset:%d" % (r, r + 3, T * 128 + g * 32))
    for n in range(16):
        ex = None
        if 2 <= n < 12 and (n & 3) != 0:
            ex = wr[:2]; wr = wr[2:]
        elif n >= 12:
            ex = wr[:2]; wr = wr[2:]
        attn_step(a, n, False, ex)
    assert not wr
    a("s_nop 1")
    a(pv_mfma(15, 1))
    tstamp(a, 2)
    a("s_mul_i32 s%d, s%d, 6144" % (S_T0, S_W))
    a("s_add_u32 s%d, s%d, %d" % (S_T0, S_T0, LDS_O))
    a("v_lshlrev_b32 v4, 2, v0")
    a("v_add_u32 v4, s%d, v4" % S_T0)
    a("s_xor_b32 s%d, s%d, 2" % (S_T1, S_W))
    a("s_mul_i32 s%d, s%d, 6144" % (S_T1, S_T1))
    a("s_add_u32 s%d, s%d, %d" % (S_T1, S_T1, LDS_O))
    a("v_lshlrev_b32 v5, 2, v0")
    a("v_add_u32 v5, s%d, v5" % S_T1)
    srd_off(a, SRD_O, S_WS, OF_OFF, OF_SZ)
    srd_off(a, SRD_Q, S_WS, BP_OFF, BP_SZ)
    a("s_cmp_eq_u32 s%d, 0" % S_KK)
    a("s_cbranch_scc1 K2_X0")
    a("s_nop 3")
    for t in range(2):
        for r in range(12):
            a("ds_write_b32 v4, v%d offset:%d" % (V_O + t * 16 + r, (t * 12 + r) * 256))
    a("s_nop 7")
    for t in range(2):
        for r in range(0, 12, 2):
            a("v_mov_b64 v[%d:%d], v[%d:%d]" % (V_O + t * 16 + r, V_O + t * 16 + r + 1, V_O + (t + 2) * 16 + r, V_O + (t + 2) * 16 + r + 1))
    a("s_branch K2_X1")
    a.label("K2_X0")
    a("s_nop 7")
    a("s_nop 3")
    for t in range(2):
        for r in range(12):
            a("ds_write_b32 v4, v%d offset:%d" % (V_O + (t + 2) * 16 + r, (t * 12 + r) * 256))
    a.label("K2_X1")
    A0 = V_KV
    a("s_movk_i32 s%d, 3277" % S_T1)
    a("v_bfrev_b32 v9, 1")
    for it in range(3):
        a("v_add_u32 v6, %d, v15" % (256 * it))
        a("v_mul_lo_u32 v7, v6, s%d" % S_T1)
        a("v_lshrrev_b32 v7, 16, v7")
        a("v_mul_u32_u24 v8, 20, v7")
        a("v_sub_u32 v8, v6, v8")
        a("v_mul_u32_u24 v%d, %d, v7" % (A0 + it, PSTR))
        a("v_lshl_add_u32 v%d, v8, 5, v%d" % (A0 + it, A0 + it))
        a("v_mul_u32_u24 v7, 1280, v7")
        a("v_lshl_add_u32 v%d, v8, 4, v7" % (A0 + 4 + it))
        if it == 2:
            a("v_cmp_gt_u32 vcc, 640, v6")
            a("s_nop 1")
            a("v_cndmask_b32 v%d, v9, v%d, vcc" % (A0 + 6, A0 + 6))
            a("v_cndmask_b32 v%d, 0, v%d, vcc" % (A0 + 2, A0 + 2))
    a("s_mul_i32 s%d, s%d, %d" % (S_T3, S_TT, 32 * 1280))
    a("s_mul_i32 s%d, s%d, 320" % (S_T1, S_CG))
    a("s_add_u32 s%d, s%d, s%d" % (S_T3, S_T3, S_T1))
    a("v_lshrrev_b32 v12, 5, v0")
    a("v_and_b32 v4, 31, v0")
    a("s_mul_i32 s%d, s%d, 20" % (S_T0, S_HEAD))
    for j in range(3):
        d = 6 + j
        if j < 2:
            a("v_lshlrev_b32 v9, 2, v12")
            a("v_add_u32 v9, %d, v9" % (8 * j))
        else:
            a("v_mov_b32 v9, 16")
        a("v_add_u32 v9, s%d, v9" % S_T0)
        a("v_lshrrev_b32 v10, 3, v9")
        a("v_lshlrev_b32 v10, 9, v10")
        a("v_and_b32 v11, 7, v9")
        a("v_lshl_add_u32 v10, v11, 1, v10")
        a("v_lshl_add_u32 v%d, v4, 4, v10" % d)
    a("v_bfrev_b32 v9, 1")
    a("v_cmp_gt_u32 vcc, 32, v0")
    a("s_lshl_b32 s%d, s%d, 3" % (S_T1, S_QB))
    a("s_lshl_b32 s%d, s%d, 2" % (S_T2, S_QH))
    a("v_cndmask_b32 v8, v9, v8, vcc")
    a("s_add_u32 s%d, s%d, s%d" % (S_T1, S_T1, S_T2))
    a("s_lshl_b32 s%d, s%d, 1" % (S_T2, S_KK))
    a("s_add_u32 s%d, s%d, s%d" % (S_T1, S_T1, S_T2))
    a("s_mul_i32 s%d, s%d, 40960" % (S_T1, S_T1))
    a("s_waitcnt lgkmcnt(0)")
    a("s_barrier")
    for t in range(2):
        for r in range(12):
            a("ds_read_b32 v%d, v5 offset:%d" % (V_S + t * 12 + r, (t * 12 + r) * 256))
    RB = V_O + 32
    RC = V_Q
    def dread(it, R):
        for m in range(4):
            a("ds_read_b128 v[%d:%d], v%d offset:%d" % (R + m * 8, R + 3 + m * 8, A0 + it, m * 32 * PSTR))
            a("ds_read_b128 v[%d:%d], v%d offset:%d" % (R + 4 + m * 8, R + 7 + m * 8, A0 + it, m * 32 * PSTR + 16))
    def dsum(it, R):
        for r in range(8):
            a("v_add_f32 v%d, v%d, v%d" % (R + r, R + r, R + 8 + r))
            a("v_add_f32 v%d, v%d, v%d" % (R + 16 + r, R + 16 + r, R + 24 + r))
            a("v_add_f32 v%d, v%d, v%d" % (R + r, R + r, R + 16 + r))
        for r in range(4):
            a("v_cvt_pk_bf16_f32 v%d, v%d, v%d" % (R + 8 + r, R + 2 * r, R + 2 * r + 1))
        a("buffer_store_dwordx4 v[%d:%d], v%d, s[%d:%d], s%d offen" % (R + 8, R + 11, A0 + 4 + it, SRD_Q, SRD_Q + 3, S_T3))
    a("s_waitcnt lgkmcnt(10)")
    dread(0, RB)
    a("s_waitcnt lgkmcnt(8)")
    for t in range(2):
        o = V_O + t * 16
        for r in range(12):
            a("v_add_f32 v%d, v%d, v%d" % (o + r, o + r, V_S + t * 12 + r))
        a("v_mov_b32 v9, v%d" % (o + 8))
        a("v_mov_b32 v10, v%d" % (o + 8))
        a("s_nop 1")
        a("v_permlane32_swap_b32 v9, v10")
        a("s_nop 1")
        a("v_rcp_f32 v10, v10")
        a("s_nop 0")
        for r in range(12):
            a("v_mul_f32 v%d, v%d, v10" % (o + r, o + r))
        for r in range(6):
            a("v_cvt_pk_bf16_f32 v%d, v%d, v%d" % (V_P + r, o + 2 * r, o + 2 * r + 1))
        for j in range(3):
            a("buffer_store_dwordx2 v[%d:%d], v%d, s[%d:%d], s%d offen" % (V_P + 2 * j, V_P + 2 * j + 1, 6 + j, SRD_O, SRD_O + 3, S_T1))
        a("s_add_u32 s%d, s%d, 40960" % (S_T1, S_T1))
        if t == 0:
            a("s_waitcnt lgkmcnt(0)")
            dread(1, RC)
    dsum(0, RB)
    dread(2, V_KV + 16)
    a("s_waitcnt lgkmcnt(8)")
    dsum(1, RC)
    a("s_waitcnt lgkmcnt(0)")
    dsum(2, V_KV + 16)
    tsdump(a, 3, [0, 9], S_W)
    a("s_endpgm")
    a.label("K2_SLOW")
    K3B = V_KV + 48
    MX = 4
    a("s_waitcnt vmcnt(0)")
    for i in range(4):
        q = V_Q + i * 8
        a("v_mov_b32 v%d, 0" % (q + 6))
        a("v_mov_b32 v%d, 0xff800000" % (MX + i))
    a("v_cmp_gt_u32 vcc, 32, v0")
    a("s_nop 1")
    for i in range(4):
        q = V_Q + i * 8
        for r in range(4, 6):
            a("v_cndmask_b32 v%d, 0, v%d, vcc" % (q + r, q + r))
    a("s_mov_b32 s%d, 0" % S_IT)
    a.label("K2_SL")
    a("buffer_load_dwordx4 v[%d:%d], v%d, s[%d:%d], s%d offen" % (K3B, K3B + 3, V_AK0, SRD_KV, SRD_KV + 3, S_X))
    a("buffer_load_dwordx2 v[%d:%d], v%d, s[%d:%d], s%d offen" % (K3B + 4, K3B + 5, V_AK1, SRD_KV, SRD_KV + 3, S_X))
    a("s_add_u32 s%d, s%d, %d" % (S_X, S_X, KVT))
    a("s_waitcnt vmcnt(0)")
    for i in range(4):
        q = V_Q + i * 8
        a(mf(V_S, K3B, q, None))
        a(mf(V_S, K3B + 4, q + 4, V_S))
        a("s_nop 7")
        a("s_nop 7")
        a("s_nop 3")
        for r in range(16):
            a("v_max_f32 v%d, v%d, v%d" % (MX + i, MX + i, V_S + r))
        a("s_nop 1")
    a("s_add_u32 s%d, s%d, 1" % (S_IT, S_IT))
    a("s_cmp_lt_u32 s%d, 64" % S_IT)
    a("s_cbranch_scc1 K2_SL")
    for i in range(4):
        q = V_Q + i * 8
        m = MX + i
        a("v_mov_b32 v8, v%d" % m)
        a("s_nop 1")
        a("v_permlane32_swap_b32 v8, v%d" % m)
        a("s_nop 1")
        a("v_max_f32 v8, v8, v%d" % m)
        a("v_sub_f32 v8, 0, v8")
        a("v_cvt_pk_bf16_f32 v9, v8, 0")
        a("v_lshlrev_b32 v%d, 16, v9" % m)
        a("v_sub_f32 v8, v8, v%d" % m)
        a("v_cvt_pk_bf16_f32 v%d, v8, 0" % (q + 7))
        a("v_lshlrev_b32 v%d, 16, v%d" % (m, q + 7))
        a("v_sub_f32 v8, v8, v%d" % m)
        a("v_or_b32 v%d, v9, v%d" % (q + 6, m))
        a("v_cvt_pk_bf16_f32 v%d, v8, 0" % (q + 7))
    a("s_branch K2_RUN")
    a.label("K2_END")
    a("s_endpgm")
```

```python
import sys, os
from dsl import *
import k1, importlib
NAME = "parallel_sum__mha_block__glu_gated_bilinear__prompt"
hdr = open("cdna_kernels/%s.s.ref" % NAME).read().split("\n")
kern = [l for l in hdr if l.startswith(";   offset") or l.startswith("; Kernarg")]
which = sys.argv[1].split(",") if len(sys.argv) > 1 else ["k1", "k2", "k3"]
out = sys.argv[2] if len(sys.argv) > 2 else "cdna_kernels/%s.s" % NAME
K = []
if "k1" in which: K.append(("mha_k1_kernel", 256, 512, k1.K1_LDS, k1.k1, k1.K1_NV, k1.K1_NV))
if "k2" in which:
    import k2
    K.append(("mha_k2_kernel", 256, k2.BLK if hasattr(k2, "BLK") else 256, k2.K2_LDS, k2.k2, k2.NV, k2.AO))
if "k3" in which:
    import k3
    K.append(("mha_k3_kernel", 256, 256, k3.K3_LDS, k3.k3, k3.NV, k3.NV))
txt = "\n".join(kern) + "\n"
for (n, g, b, lds, fn, nv, ao) in K:
    txt += "; @launch kernel=%s grid=(%d,1,1) block=(%d,1,1) lds=%d\n" % (n, g, b, lds)
txt += '.amdgcn_target "amdgcn-amd-amdhsa--gfx950"\n.text\n'
for (n, g, b, lds, fn, nv, ao) in K:
    a = Asm()
    a.lab = 1000 * (1 + [k[0] for k in K].index(n))
    fn(a)
    pol = os.environ.get("ST" + n[5], "")
    if pol:
        a.lines = [(l + " " + pol.replace("+", " ")) if l.strip().startswith("buffer_store") and "s[96:99]" not in l else l for l in a.lines]
    txt += ".globl %s\n.p2align 8\n.type %s,@function\n%s:\n" % (n, n, n) + a.text()
txt += '.section .rodata,"a"\n'
for (n, g, b, lds, fn, nv, ao) in K:
    txt += """.p2align 6
.amdhsa_kernel %s
  .amdhsa_next_free_vgpr %d
  .amdhsa_next_free_sgpr 102
  .amdhsa_accum_offset %d
  .amdhsa_group_segment_fixed_size 0
  .amdhsa_kernarg_size 80
  .amdhsa_user_sgpr_count 2
  .amdhsa_user_sgpr_kernarg_segment_ptr 1
  .amdhsa_system_sgpr_workgroup_id_x 1
.end_amdhsa_kernel
""" % (n, nv, ao)
open(out, "w").write(txt)
print("wrote", out, len(txt), "bytes")
```

```python
from dsl import *
import os
from k1 import (KVT, QF_OFF, QF_SZ, KV_OFF, KV_SZ, KNT_OFF, KNT_SZ, HF_OFF, HF_SZ, WDF_OFF, WDF_SZ, OF_OFF, OF_SZ, BP_OFF, BP_SZ, f2u, tstamp, tsdump, FL)

AO = 216
NV = 216 + 176
K2F = os.environ.get('K2F', '').split(',')
PSTR = 656
LDS_D = 0
LDS_O = 4 * 32 * PSTR
LDS_F = LDS_O + 4 * 6144
K2_LDS = LDS_F

S_WS = 4
SRD_Q, SRD_KV, SRD_O, SRD_N = 8, 12, 16, 20
S_W, S_HEAD, S_QB, S_T0, S_T1, S_T2, S_T3 = 24, 25, 26, 27, 28, 29, 30
S_KV, S_KVL, S_IT = 31, 32, 33
S_VM = 34
S_QH, S_KK = 36, 37
S_TT, S_CG = 38, 39
S_X = 40

V_O, V_Q, V_S, V_P, V_KV = 16, 80, 112, 144, 152
V_AK0, V_AK1, V_AV = 1, 2, 3

def kvload(b):
    k = V_KV + b * 16
    return ["buffer_load_dwordx4 v[%d:%d], v%d, s[%d:%d], s%d offen" % (k, k + 3, V_AK0, SRD_KV, SRD_KV + 3, S_KV),
            "buffer_load_dwordx2 v[%d:%d], v%d, s[%d:%d], s%d offen" % (k + 4, k + 5, V_AK1, SRD_KV, SRD_KV + 3, S_KV),
            "buffer_load_dwordx4 v[%d:%d], v%d, s[%d:%d], s%d offen" % (k + 8, k + 11, V_AV, SRD_KV, SRD_KV + 3, S_KV),
            "buffer_load_dwordx4 v[%d:%d], v%d, s[%d:%d], s%d offen offset:672" % (k + 12, k + 15, V_AV, SRD_KV, SRD_KV + 3, S_KV),
            "s_add_u32 s%d, s%d, %d" % (S_KV, S_KV, KVT),
            "s_min_u32 s%d, s%d, s%d" % (S_KV, S_KV, S_KVL)]

def mf(d, a_, b_, c):
    cs = "0" if c is None else "v[%d:%d]" % (c, c + 15)
    return "v_mfma_f32_32x32x16_bf16 v[%d:%d], v[%d:%d], v[%d:%d], %s" % (d, d + 15, a_, a_ + 3, b_, b_ + 3, cs)

def s_mfma(n, part):
    n &= 15
    b, i = n >> 2, n & 3
    s = V_S + (n & 1) * 16
    k = V_KV + b * 16 + part * 4
    q = V_Q + i * 8 + part * 4
    return mf(s, k, q, None if part == 0 else s)

def pv_mfma(n, part):
    n &= 15
    b, i = n >> 2, n & 3
    v = V_KV + b * 16 + 8 + part * 4
    o = V_O + i * 16
    return mf(o, v, V_P + part * 4, o)

def attn_step_old(a, n):
    s = V_S + (n & 1) * 16
    E = lambda r: a("v_exp_f32 v%d, v%d" % (s + r, s + r))
    C = lambda r: a("v_cvt_pk_bf16_f32 v%d, v%d, v%d" % (V_P + r, s + 2 * r, s + 2 * r + 1))
    if (n & 3) == 3:
        a("s_waitcnt vmcnt(8)")
    a(s_mfma(n + 1, 0))
    for r in range(0, 4): E(r)
    a(pv_mfma(n - 1, 1))
    if (n & 3) == 0:
        for x in kvload(((n >> 2) - 1) & 3): a(x)
    for r in range(4, 8): E(r)
    a(s_mfma(n + 1, 1))
    for r in range(0, 4): C(r)
    for r in range(8, 12): E(r)
    a(pv_mfma(n, 0))
    for r in range(12, 16): E(r)
    for r in range(4, 8): C(r)

def wave_max(a, r, t):
    for sh in (1, 2, 4, 8):
        a("s_nop 1")
        a("v_max_f32_dpp v%d, v%d, v%d row_ror:%d row_mask:0xf bank_mask:0xf" % (r, r, r, sh))
    for ins in ("v_permlane16_swap_b32", "v_permlane32_swap_b32"):
        a("v_mov_b32 v%d, v%d" % (t, r))
        a("s_nop 1")
        a("%s v%d, v%d" % (ins, t, r))
        a("s_nop 1")
        a("v_max_f32 v%d, v%d, v%d" % (r, r, t))


SRD_H, SRD_W, SRD_H2, SRD_W2 = 44, 48, 52, 64
S_DH, S_DHL, S_DW, S_DWL = 56, 57, 58, 59
DBUF = 80
def amf(T, b):
    r = DBUF + b * 24
    return "v_mfma_f32_32x32x16_bf16 a[%d:%d], a[%d:%d], a[%d:%d], a[%d:%d]" % (T * 16, T * 16 + 15, r + 4 + 4 * T, r + 7 + 4 * T, r, r + 3, T * 16, T * 16 + 15)

def dload(b, g=None, srd2=False):
    r = DBUF + b * 24
    sh, sw = (SRD_H2, SRD_W2) if srd2 else (SRD_H, SRD_W)
    L = ["buffer_load_dwordx4 a[%d:%d], v%d, s[%d:%d], s%d offen offset:%d" % (r, r + 3, V_AK0, sh, sh + 3, S_DH, g * 1024)]
    for T in range(5):
        L.append("buffer_load_dwordx4 a[%d:%d], v%d, s[%d:%d], s%d offen offset:%d" % (r + 4 + 4 * T, r + 7 + 4 * T, 10 + T, sw, sw + 3, S_DW, g * 1024))
    return L

def attn_step(a, n, withd, extra=None):
    s = V_S + (n & 1) * 16
    E = lambda r: "v_exp_f32 v%d, v%d" % (s + r, s + r)
    C = lambda r: "v_cvt_pk_bf16_f32 v%d, v%d, v%d" % (V_P + r, s + 2 * r, s + 2 * r + 1)
    g, j = n >> 2, n & 3
    M1, M2, M3, M4 = s_mfma(n + 1, 0), pv_mfma(n - 1, 1), s_mfma(n + 1, 1), pv_mfma(n, 0)
    F = []
    if j == 0 and (withd or g == 0): F += kvload((g - 1) & 3)[:5]
    if withd:
        dl = dload((g - 1) & 3, (g + 3) & 3, srd2=True)
        if j > 0: F += dl[2 * (j - 1):2 * j]
        if g == 0 and j == 3: F += ["s_add_u32 s%d, s%d, 4096" % (S_DH, S_DH), "s_add_u32 s%d, s%d, 4096" % (S_DW, S_DW)]
    if extra: F += extra
    if j == 3 and (withd or g < 3): a("s_waitcnt vmcnt(%d)" % (24 if withd else (20, 10, 0)[g]))
    if not withd:
        seq = [M1, "f", E(0), E(1), E(2), E(3), M2, "f", E(4), E(5), E(6), E(7), M3, "f", C(0), C(1), C(2), C(3), E(8), E(9), E(10), E(11), M4, "f", "f",
               E(12), E(13), E(14), E(15), C(4), C(5), C(6), C(7)]
    elif j < 3:
        D = amf(j, g)
        seq = [M1, "k", E(0), E(1), E(2), E(3), M2, "f", E(4), E(5), E(6), E(7), M3, "f", C(0), C(1), C(2), C(3), E(8), E(9), M4, "f",
               E(10), E(11), E(12), E(13), "p", D, "f", E(14), E(15), C(4), C(5), C(6), C(7)]
    else:
        D1, D2 = amf(3, g), amf(4, g)
        seq = [M1, E(0), E(1), E(2), M2, "f", E(3), E(4), E(5), D1, "f", E(6), E(7), C(0), C(1), M3, "f", C(2), C(3), E(8), E(9), M4, "f",
               E(10), E(11), E(12), D2, E(13), E(14), E(15), C(4), C(5), C(6), C(7)]
    for x in seq:
        if x == "k":
            if j == 0 and F: a(F.pop(0))
        elif x == "f":
            if F: a(F.pop(0))
        elif x == "p":
            if j == 0: a("s_waitcnt vmcnt(24)")
        else: a(x)
    for y in F: a(y)

def k2(a):
    a("s_cmp_ge_u32 s2, 256")
    a("s_cbranch_scc1 K2_END")
    tstamp(a, 0)
    a("s_load_dwordx2 s[4:5], s[0:1], 72")
    a("v_lshrrev_b32 v1, 6, v0")
    a("s_and_b32 s%d, s2, 7" % S_T0)
    a("s_lshr_b32 s%d, s2, 3" % S_T1)
    a("v_readfirstlane_b32 s%d, v1" % S_W)
    a("s_lshr_b32 s%d, s%d, 3" % (S_CG, S_T1))
    a("s_lshl_b32 s%d, s%d, 2" % (S_HEAD, S_T0))
    a("s_add_u32 s%d, s%d, s%d" % (S_HEAD, S_HEAD, S_CG))
    a("s_and_b32 s%d, s%d, 7" % (S_QB, S_T1))
    a("s_lshl_b32 s%d, s%d, 3" % (S_TT, S_T0))
    a("s_add_u32 s%d, s%d, s%d" % (S_TT, S_TT, S_QB))
    a("v_mov_b32 v15, v0")
    a("v_and_b32 v0, 63, v0")
    a("v_lshlrev_b32 v%d, 4, v0" % V_AK0)
    a("s_and_b32 s%d, s%d, 1" % (S_QH, S_W))
    a("s_lshr_b32 s%d, s%d, 1" % (S_KK, S_W))
    a("v_and_b32 v4, 31, v0")
    a("v_lshrrev_b32 v5, 5, v0")
    a("v_lshlrev_b32 v%d, 3, v4" % V_AK1)
    a("v_add_u32 v%d, 1024, v%d" % (V_AK1, V_AK1))
    a("v_mul_u32_u24 v%d, 336, v5" % V_AV)
    a("v_min_u32 v7, 20, v4")
    a("v_lshl_add_u32 v%d, v7, 4, v%d" % (V_AV, V_AV))
    a("v_add_u32 v%d, 1280, v%d" % (V_AV, V_AV))
    a("s_lshl_b32 s%d, s%d, 6" % (S_T0, S_HEAD))
    a("s_lshl_b32 s%d, s%d, 5" % (S_T1, S_KK))
    a("s_add_u32 s%d, s%d, s%d" % (S_T1, S_T1, S_T0))
    a("s_mul_i32 s%d, s%d, %d" % (S_KV, S_T1, KVT))
    a("s_add_u32 s%d, s%d, %d" % (S_KVL, S_KV, 31 * KVT))
    a("s_mul_i32 s%d, s%d, %d" % (S_X, S_T0, KVT))
    a("s_lshl_b32 s%d, s%d, 3" % (S_T1, S_QB))
    a("s_lshl_b32 s%d, s%d, 2" % (S_T2, S_QH))
    a("s_add_u32 s%d, s%d, s%d" % (S_T1, S_T1, S_T2))
    a("s_add_u32 s%d, s%d, s%d" % (S_T1, S_T1, S_T0))
    a("s_mul_i32 s%d, s%d, 1536" % (S_T1, S_T1))
    a("v_lshlrev_b32 v6, 4, v4")
    a("s_lshl_b32 s%d, s%d, 8" % (S_T2, S_HEAD))
    a("v_lshlrev_b32 v7, 2, v0")
    a("s_waitcnt lgkmcnt(0)")
    srd_off(a, SRD_N, S_WS, KNT_OFF, KNT_SZ)
    srd_off(a, SRD_Q, S_WS, QF_OFF, QF_SZ)
    a("buffer_load_dword v8, v7, s[%d:%d], s%d offen" % (SRD_N, SRD_N + 3, S_T2))
    for i in range(4):
        q = V_Q + i * 8
        a("buffer_load_dwordx4 v[%d:%d], v%d, s[%d:%d], s%d offen" % (q, q + 3, V_AK0, SRD_Q, SRD_Q + 3, S_T1))
        a("buffer_load_dwordx4 v[%d:%d], v6, s[%d:%d], s%d offen offset:1024" % (q + 4, q + 7, SRD_Q, SRD_Q + 3, S_T1))
        a("s_add_u32 s%d, s%d, 1536" % (S_T1, S_T1))
    srd_off(a, SRD_KV, S_WS, KV_OFF, KV_SZ + 4 * KVT)
    for b in range(4):
        k = V_KV + b * 16
        a("v_mov_b32 v%d, 0x3f803f80" % (k + 6))
        a("v_mov_b32 v%d, 0x3f80" % (k + 7))
        if b == 3:
            for r in range(12, 16, 2):
                a("v_mov_b64 v[%d:%d], 0" % (k + r, k + r + 1))
    for x in kvload(0): a(x)
    srd_off(a, SRD_H, S_WS, HF_OFF, HF_SZ + 8192)
    srd_off(a, SRD_H2, S_WS, HF_OFF, HF_SZ)
    srd_off(a, SRD_W, S_WS, WDF_OFF, WDF_SZ + 8192)
    srd_off(a, SRD_W2, S_WS, WDF_OFF, WDF_SZ)
    a("s_mul_i32 s%d, s%d, 27" % (S_T0, S_W))
    a("s_mul_i32 s%d, s%d, 108" % (S_T1, S_TT))
    a("s_add_u32 s%d, s%d, s%d" % (S_T1, S_T1, S_T0))
    a("s_lshl_b32 s%d, s%d, 10" % (S_DH, S_T1))
    a("s_mul_i32 s%d, s%d, 540" % (S_T1, S_CG))
    a("s_add_u32 s%d, s%d, s%d" % (S_T1, S_T1, S_T0))
    a("s_lshl_b32 s%d, s%d, 10" % (S_DW, S_T1))
    for T in range(5):
        a("v_add_u32 v%d, 0x%x, v%d" % (10 + T, T * 108 * 1024, V_AK0))
    for b in range(3):
        if b > 0:
            for x in kvload(b): a(x)
        for x in dload(b, b): a(x)
    for r in range(0, 64, 2):
        a("v_mov_b64 v[%d:%d], 0" % (V_O + r, V_O + r + 1))
    for r in range(0, 8, 2):
        a("v_mov_b64 v[%d:%d], 0" % (V_P + r, V_P + r + 1))
    for r in range(80):
        a("v_accvgpr_write_b32 a%d, 0" % r)
    a("s_waitcnt vmcnt(30)")
    tstamp(a, 1)
    wave_max(a, 8, 9)
    a("v_sqrt_f32 v8, v8")
    a("s_nop 0")
    a("v_mul_f32 v8, 0x%x, v8" % f2u(1.03))
    a("s_mov_b64 s[60:61], 0")
    a("v_mov_b32 v7, 0x%x" % f2u(50.0))
    for i in range(4):
        q = V_Q + i * 8
        a("v_mul_f32 v9, v8, v%d" % (q + 6))
        a("v_cmp_nle_f32 vcc, v9, v7")
        a("v_sub_f32 v9, 0, v9")
        a("s_or_b64 s[60:61], s[60:61], vcc")
        a("v_cvt_pk_bf16_f32 v%d, v9, 0" % (q + 6))
        a("v_mov_b32 v%d, 0" % (q + 7))
    a("s_cmp_lg_u64 s[60:61], 0")
    a("s_cbranch_scc1 K2_SLOW")
    a.label("K2_RUN")
    a("v_cmp_gt_u32 vcc, 32, v0")
    a("s_nop 1")
    for i in range(4):
        q = V_Q + i * 8
        for r in range(4, 8):
            a("v_cndmask_b32 v%d, 0, v%d, vcc" % (q + r, q + r))
    a("s_waitcnt vmcnt(26)")
    a("s_nop 0")
    a(s_mfma(0, 0))
    a(s_mfma(0, 1))
    a("s_mov_b32 s%d, 0" % S_IT)
    a("s_nop 7")
    a("s_nop 3")
    a.label("K2_LOOP")
    a("s_cmp_eq_u32 s%d, 6" % S_IT)
    a("s_cselect_b32 s%d, 0, s%d" % (SRD_H2 + 2, SRD_H + 2))
    a("s_cselect_b32 s%d, 0, s%d" % (SRD_W2 + 2, SRD_W + 2))
    for n in range(16):
        attn_step(a, n, True)
    a("s_add_u32 s%d, s%d, 1" % (S_IT, S_IT))
    a("s_cmp_lt_u32 s%d, 7" % S_IT)
    a("s_cbranch_scc1 K2_LOOP")
    a("v_and_b32 v4, 31, v0")
    a("v_lshrrev_b32 v5, 5, v0")
    a("v_mul_u32_u24 v4, %d, v4" % PSTR)
    a("v_lshl_add_u32 v4, v5, 4, v4")
    a("s_mul_i32 s%d, s%d, %d" % (S_T0, S_W, 32 * PSTR))
    a("v_add_u32 v4, s%d, v4" % S_T0)
    wr = []
    for T in range(5):
        for g in range(4):
            r = T * 16 + g * 4
            wr.append("ds_write_b128 v4, a[%d:%d] offset:%d" % (r, r + 3, T * 128 + g * 32))
    for n in range(16):
        ex = None
        if 2 <= n < 12 and (n & 3) != 0:
            ex = wr[:2]; wr = wr[2:]
        elif n >= 12:
            ex = wr[:2]; wr = wr[2:]
        attn_step(a, n, False, ex)
    assert not wr
    a("s_nop 1")
    a(pv_mfma(15, 1))
    tstamp(a, 2)
    a("s_mul_i32 s%d, s%d, 6144" % (S_T0, S_W))
    a("s_add_u32 s%d, s%d, %d" % (S_T0, S_T0, LDS_O))
    a("v_lshlrev_b32 v4, 2, v0")
    a("v_add_u32 v4, s%d, v4" % S_T0)
    a("s_xor_b32 s%d, s%d, 2" % (S_T1, S_W))
    a("s_mul_i32 s%d, s%d, 6144" % (S_T1, S_T1))
    a("s_add_u32 s%d, s%d, %d" % (S_T1, S_T1, LDS_O))
    a("v_lshlrev_b32 v5, 2, v0")
    a("v_add_u32 v5, s%d, v5" % S_T1)
    srd_off(a, SRD_O, S_WS, OF_OFF, OF_SZ)
    srd_off(a, SRD_Q, S_WS, BP_OFF, BP_SZ)
    a("s_cmp_eq_u32 s%d, 0" % S_KK)
    a("s_cbranch_scc1 K2_X0")
    a("s_nop 3")
    for t in range(2):
        for r in range(12):
            a("ds_write_b32 v4, v%d offset:%d" % (V_O + t * 16 + r, (t * 12 + r) * 256))
    a("s_nop 7")
    for t in range(2):
        for r in range(0, 12, 2):
            a("v_mov_b64 v[%d:%d], v[%d:%d]" % (V_O + t * 16 + r, V_O + t * 16 + r + 1, V_O + (t + 2) * 16 + r, V_O + (t + 2) * 16 + r + 1))
    a("s_branch K2_X1")
    a.label("K2_X0")
    a("s_nop 7")
    a("s_nop 3")
    for t in range(2):
        for r in range(12):
            a("ds_write_b32 v4, v%d offset:%d" % (V_O + (t + 2) * 16 + r, (t * 12 + r) * 256))
    a.label("K2_X1")
    A0 = V_KV
    a("s_movk_i32 s%d, 3277" % S_T1)
    a("v_bfrev_b32 v9, 1")
    for it in range(3):
        a("v_add_u32 v6, %d, v15" % (256 * it))
        a("v_mul_lo_u32 v7, v6, s%d" % S_T1)
        a("v_lshrrev_b32 v7, 16, v7")
        a("v_mul_u32_u24 v8, 20, v7")
        a("v_sub_u32 v8, v6, v8")
        a("v_mul_u32_u24 v%d, %d, v7" % (A0 + it, PSTR))
        a("v_lshl_add_u32 v%d, v8, 5, v%d" % (A0 + it, A0 + it))
        a("v_mul_u32_u24 v7, 1280, v7")
        a("v_lshl_add_u32 v%d, v8, 4, v7" % (A0 + 4 + it))
        if it == 2:
            a("v_cmp_gt_u32 vcc, 640, v6")
            a("s_nop 1")
            a("v_cndmask_b32 v%d, v9, v%d, vcc" % (A0 + 6, A0 + 6))
            a("v_cndmask_b32 v%d, 0, v%d, vcc" % (A0 + 2, A0 + 2))
    a("s_mul_i32 s%d, s%d, %d" % (S_T3, S_TT, 32 * 1280))
    a("s_mul_i32 s%d, s%d, 320" % (S_T1, S_CG))
    a("s_add_u32 s%d, s%d, s%d" % (S_T3, S_T3, S_T1))
    a("v_lshrrev_b32 v12, 5, v0")
    a("v_and_b32 v4, 31, v0")
    a("s_mul_i32 s%d, s%d, 20" % (S_T0, S_HEAD))
    for j in range(3):
        d = 6 + j
        if j < 2:
            a("v_lshlrev_b32 v9, 2, v12")
            a("v_add_u32 v9, %d, v9" % (8 * j))
        else:
            a("v_mov_b32 v9, 16")
        a("v_add_u32 v9, s%d, v9" % S_T0)
        a("v_lshrrev_b32 v10, 3, v9")
        a("v_lshlrev_b32 v10, 9, v10")
        a("v_and_b32 v11, 7, v9")
        a("v_lshl_add_u32 v10, v11, 1, v10")
        a("v_lshl_add_u32 v%d, v4, 4, v10" % d)
    a("v_bfrev_b32 v9, 1")
    a("v_cmp_gt_u32 vcc, 32, v0")
    a("s_lshl_b32 s%d, s%d, 3" % (S_T1, S_QB))
    a("s_lshl_b32 s%d, s%d, 2" % (S_T2, S_QH))
    a("v_cndmask_b32 v8, v9, v8, vcc")
    a("s_add_u32 s%d, s%d, s%d" % (S_T1, S_T1, S_T2))
    a("s_lshl_b32 s%d, s%d, 1" % (S_T2, S_KK))
    a("s_add_u32 s%d, s%d, s%d" % (S_T1, S_T1, S_T2))
    a("s_mul_i32 s%d, s%d, 40960" % (S_T1, S_T1))
    a("s_waitcnt lgkmcnt(0)")
    a("s_barrier")
    for t in range(2):
        for r in range(12):
            a("ds_read_b32 v%d, v5 offset:%d" % (V_S + t * 12 + r, (t * 12 + r) * 256))
    RB = V_O + 32
    RC = V_Q
    def dread(it, R):
        for m in range(4):
            a("ds_read_b128 v[%d:%d], v%d offset:%d" % (R + m * 8, R + 3 + m * 8, A0 + it, m * 32 * PSTR))
            a("ds_read_b128 v[%d:%d], v%d offset:%d" % (R + 4 + m * 8, R + 7 + m * 8, A0 + it, m * 32 * PSTR + 16))
    def dsum(it, R):
        for r in range(8):
            a("v_add_f32 v%d, v%d, v%d" % (R + r, R + r, R + 8 + r))
            a("v_add_f32 v%d, v%d, v%d" % (R + 16 + r, R + 16 + r, R + 24 + r))
            a("v_add_f32 v%d, v%d, v%d" % (R + r, R + r, R + 16 + r))
        for r in range(4):
            a("v_cvt_pk_bf16_f32 v%d, v%d, v%d" % (R + 8 + r, R + 2 * r, R + 2 * r + 1))
        a("buffer_store_dwordx4 v[%d:%d], v%d, s[%d:%d], s%d offen" % (R + 8, R + 11, A0 + 4 + it, SRD_Q, SRD_Q + 3, S_T3))
    a("s_waitcnt lgkmcnt(10)")
    dread(0, RB)
    a("s_waitcnt lgkmcnt(8)")
    for t in range(2):
        o = V_O + t * 16
        for r in range(12):
            a("v_add_f32 v%d, v%d, v%d" % (o + r, o + r, V_S + t * 12 + r))
        a("v_mov_b32 v9, v%d" % (o + 8))
        a("v_mov_b32 v10, v%d" % (o + 8))
        a("s_nop 1")
        a("v_permlane32_swap_b32 v9, v10")
        a("s_nop 1")
        a("v_rcp_f32 v10, v10")
        a("s_nop 0")
        for r in range(12):
            a("v_mul_f32 v%d, v%d, v10" % (o + r, o + r))
        for r in range(6):
            a("v_cvt_pk_bf16_f32 v%d, v%d, v%d" % (V_P + r, o + 2 * r, o + 2 * r + 1))
        for j in range(3):
            a("buffer_store_dwordx2 v[%d:%d], v%d, s[%d:%d], s%d offen" % (V_P + 2 * j, V_P + 2 * j + 1, 6 + j, SRD_O, SRD_O + 3, S_T1))
        a("s_add_u32 s%d, s%d, 40960" % (S_T1, S_T1))
        if t == 0:
            a("s_waitcnt lgkmcnt(0)")
            dread(1, RC)
    dsum(0, RB)
    dread(2, V_KV + 16)
    a("s_waitcnt lgkmcnt(8)")
    dsum(1, RC)
    a("s_waitcnt lgkmcnt(0)")
    dsum(2, V_KV + 16)
    tsdump(a, 3, [0, 9], S_W)
    a("s_endpgm")
    a.label("K2_SLOW")
    K3B = V_KV + 48
    MX = 4
    a("s_waitcnt vmcnt(0)")
    for i in range(4):
        q = V_Q + i * 8
        a("v_mov_b32 v%d, 0" % (q + 6))
        a("v_mov_b32 v%d, 0xff800000" % (MX + i))
    a("v_cmp_gt_u32 vcc, 32, v0")
    a("s_nop 1")
    for i in range(4):
        q = V_Q + i * 8
        for r in range(4, 6):
            a("v_cndmask_b32 v%d, 0, v%d, vcc" % (q + r, q + r))
    a("s_mov_b32 s%d, 0" % S_IT)
    a.label("K2_SL")
    a("buffer_load_dwordx4 v[%d:%d], v%d, s[%d:%d], s%d offen" % (K3B, K3B + 3, V_AK0, SRD_KV, SRD_KV + 3, S_X))
    a("buffer_load_dwordx2 v[%d:%d], v%d, s[%d:%d], s%d offen" % (K3B + 4, K3B + 5, V_AK1, SRD_KV, SRD_KV + 3, S_X))
    a("s_add_u32 s%d, s%d, %d" % (S_X, S_X, KVT))
    a("s_waitcnt vmcnt(0)")
    for i in range(4):
        q = V_Q + i * 8
        a(mf(V_S, K3B, q, None))
        a(mf(V_S, K3B + 4, q + 4, V_S))
        a("s_nop 7")
        a("s_nop 7")
        a("s_nop 3")
        for r in range(16):
            a("v_max_f32 v%d, v%d, v%d" % (MX + i, MX + i, V_S + r))
        a("s_nop 1")
    a("s_add_u32 s%d, s%d, 1" % (S_IT, S_IT))
    a("s_cmp_lt_u32 s%d, 64" % S_IT)
    a("s_cbranch_scc1 K2_SL")
    for i in range(4):
        q = V_Q + i * 8
        m = MX + i
        a("v_mov_b32 v8, v%d" % m)
        a("s_nop 1")
        a("v_permlane32_swap_b32 v8, v%d" % m)
        a("s_nop 1")
        a("v_max_f32 v8, v8, v%d" % m)
        a("v_sub_f32 v8, 0, v8")
        a("v_cvt_pk_bf16_f32 v9, v8, 0")
        a("v_lshlrev_b32 v%d, 16, v9" % m)
        a("v_sub_f32 v8, v8, v%d" % m)
        a("v_cvt_pk_bf16_f32 v%d, v8, 0" % (q + 7))
        a("v_lshlrev_b32 v%d, 16, v%d" % (m, q + 7))
        a("v_sub_f32 v8, v8, v%d" % m)
        a("v_or_b32 v%d, v9, v%d" % (q + 6, m))
        a("v_cvt_pk_bf16_f32 v%d, v8, 0" % (q + 7))
    a("s_branch K2_RUN")
    a.label("K2_END")
    a("s_endpgm")
```
